```python
import torch

def _softmax(x, axis=-1):
    return torch.softmax(x, dim=axis)
def _gelu(x):
    return torch.nn.functional.gelu(x, approximate="tanh")
def _silu(x):
    return torch.nn.functional.silu(x)
def _sigmoid(x):
    return torch.sigmoid(x)
def _layernorm(x, axis=-1, eps=1e-5):
    m = x.mean(dim=axis, keepdim=True)
    v = x.var(dim=axis, keepdim=True, unbiased=False)
    return (x - m) / torch.sqrt(v + eps)
def _scatter_add(tgt, idx, src, axis=0):
    return tgt.clone().index_add_(axis, idx, src)
def _segment_sum(src, seg, n):
    out = torch.zeros((n,) + src.shape[1:], dtype=src.dtype)
    return out.index_add_(0, seg, src)
def _pad(x, pw):
    flat = tuple(v for pair in reversed(pw) for v in pair)
    return torch.nn.functional.pad(x, flat)

kernel_name = 'gated_mix__gqa_block_cached__geglu_ffn__decode'

def setup_inputs():

    _w = (lambda a: (lambda t: t.to(torch.bfloat16) if t.is_floating_point() else t)(torch.as_tensor(a)))
    def _A_setup():
        B, Sq, D = 2, 1, 640
        Hq, Hkv, Sk, Dh = 32, 32, 8192, 128
        assert Hq % Hkv == 0, (Hq, Hkv)
        return {
            "x": _w((lambda *s: torch.randn(*s, dtype=torch.bfloat16) * 0.05)(B, Sq, D)),
            "k_cache": _w((lambda *s: torch.randn(*s, dtype=torch.bfloat16) * 6.4)(B, Hkv, Sk, Dh)),
            "v_cache": _w((lambda *s: torch.randn(*s, dtype=torch.bfloat16) * 0.2)(B, Hkv, Sk, Dh)),
            "wq": _w((lambda *s: torch.randn(*s, dtype=torch.bfloat16) * 6.4)(D, Hq * Dh) * (D ** -0.5)),
            "wo": _w((lambda *s: torch.randn(*s, dtype=torch.bfloat16) * 0.2)(Hq * Dh, D) * ((Hq * Dh) ** -0.5)),
        }
    _A_in = _A_setup()

    def _B_setup():
        B, S, D, F = 2, 1, 640, 1728
        return {
            "x": _w((lambda *s: torch.randn(*s, dtype=torch.bfloat16) * 0.05)(B, S, D)),
            "w_gate": _w((lambda *s: torch.randn(*s, dtype=torch.bfloat16) * 0.05)(D, F)),
            "w_up": _w((lambda *s: torch.randn(*s, dtype=torch.bfloat16) * 0.05)(D, F)),
            "w_down": _w((lambda *s: torch.randn(*s, dtype=torch.bfloat16) * 0.05)(F, D)),
        }
    _B_in = _B_setup()

    return {
        "A_x": _A_in["x"],
        "A_k_cache": _A_in["k_cache"],
        "A_v_cache": _A_in["v_cache"],
        "A_wq": _A_in["wq"],
        "A_wo": _A_in["wo"],
        "B_x": _B_in["x"],
        "B_w_gate": _B_in["w_gate"],
        "B_w_up": _B_in["w_up"],
        "B_w_down": _B_in["w_down"],
        "gate_w": _w((lambda *s: torch.randn(*s, dtype=torch.bfloat16) * 0.05)(640) * 16.0),
    }

def reference(A_x, A_k_cache, A_v_cache, A_wq, A_wo, B_x, B_w_gate, B_w_up, B_w_down, gate_w):
    def _A_ref(x, k_cache, v_cache, wq, wo):
        B, Sq, D = x.shape
        Hq, Dh = 32, 128
        Hkv = k_cache.shape[1]
        rep = Hq // Hkv
        q = (lambda x, *d: x.permute(*d))((x @ wq).reshape(B, Sq, Hq, Dh), 0, 2, 1, 3)
        k = (lambda x, n, axis: torch.repeat_interleave(x, n, dim=axis))(k_cache, rep, axis=1)
        v = (lambda x, n, axis: torch.repeat_interleave(x, n, dim=axis))(v_cache, rep, axis=1)
        scores = torch.einsum("bhqd,bhkd->bhqk", q, k) * (Dh ** -0.5)
        p = _softmax(scores, axis=-1)
        o = torch.einsum("bhqk,bhkd->bhqd", p, v)
        return (lambda x, *d: x.permute(*d))(o, 0, 2, 1, 3).reshape(B, Sq, Hq * Dh) @ wo

    def _B_ref(x, w_gate, w_up, w_down):
        return (_gelu(x @ w_gate) * (x @ w_up)) @ w_down

    x = A_x
    g = _sigmoid((x * gate_w).sum(-1, keepdims=True))
    a = _A_ref(x, A_k_cache, A_v_cache, A_wq, A_wo)
    b = _B_ref(x, B_w_gate, B_w_up, B_w_down)
    return g * a + (1 - g) * b
```

```python
import re

_REG = re.compile(r"\b([vsa])(\d+)\b|\b([vsa])\[(\d+):(\d+)\]|\b(vcc|exec|m0)\b")

TRANS = ("v_exp_f32", "v_log_f32", "v_rcp_f32", "v_rsq_f32", "v_sqrt_f32", "v_sin_f32", "v_cos_f32")


def regs_of(tok):
    out = set()
    for m in _REG.finditer(tok):
        if m.group(1):
            out.add((m.group(1), int(m.group(2))))
        elif m.group(3):
            for r in range(int(m.group(4)), int(m.group(5)) + 1):
                out.add((m.group(3), r))
        else:
            out.add((m.group(6), 0))
    return out


def split_ops(s):
    ops, depth, cur = [], 0, ""
    for ch in s:
        if ch in "[(":
            depth += 1
        elif ch in "])":
            depth -= 1
        if ch == "," and depth == 0:
            ops.append(cur.strip())
            cur = ""
        else:
            cur += ch
    if cur.strip():
        ops.append(cur.strip())
    return ops


class Ins:
    __slots__ = ("text", "mn", "defs", "uses", "cls", "dpp", "srcc", "srcab", "states", "stdata")

    def __init__(self, text):
        self.text = text
        parts = text.split(None, 1)
        mn = parts[0]
        self.mn = mn
        rest = parts[1] if len(parts) > 1 else ""
        ops = split_ops(rest)
        clean = []
        for o in ops:
            clean.append(o.split(" ")[0] if not o.startswith("-") else o.split(" ")[0])
        self.dpp = "_dpp" in mn or " row_" in text or "quad_perm" in text
        self.defs, self.uses = set(), set()
        self.srcc, self.srcab, self.stdata = set(), set(), set()
        self.states = 1
        R = [regs_of(c) for c in clean]
        if mn == "s_nop":
            self.cls = "nop"
            self.states = int(rest.strip(), 0) + 1
        elif mn.startswith("v_mfma"):
            self.cls = "mfma"
            self.defs = R[0]
            self.srcab = R[1] | R[2]
            self.srcc = R[3] if len(R) > 3 else set()
            self.uses = self.srcab | self.srcc
        elif mn.startswith("v_permlane") and "swap" in mn:
            self.cls = "permlane"
            self.defs = R[0] | R[1]
            self.uses = R[0] | R[1]
        elif mn.startswith("v_readfirstlane") or mn.startswith("v_readlane"):
            self.cls = "readlane"
            self.defs = R[0]
            self.uses = set().union(*R[1:])
        elif mn.startswith("v_cmp"):
            self.cls = "valu"
            self.defs = R[0]
            self.uses = set().union(*R[1:])
        elif mn.startswith("v_"):
            self.cls = "valu"
            base = mn.replace("_dpp", "").replace("_e32", "").replace("_e64", "")
            if base in TRANS:
                self.cls = "trans"
            if base.startswith("v_dot"):
                self.cls = "dot"
            self.defs = set(R[0])
            self.uses = set().union(*R[1:]) if len(R) > 1 else set()
            if base in ("v_fmac_f32", "v_dot2c_f32_bf16") or self.dpp:
                self.uses |= R[0]
            if base.startswith("v_dot2c"):
                self.srcc = set(R[0])
                self.srcab = set().union(*R[1:])
            elif base.startswith("v_dot"):
                self.srcc = R[3]
                self.srcab = R[1] | R[2]
            if base in ("v_add_co_u32", "v_sub_co_u32", "v_addc_co_u32"):
                self.defs |= R[1]
            if base == "v_cndmask_b32" and len(R) == 3:
                self.uses.add(("vcc", 0))
        elif mn.startswith("buffer_load") or mn.startswith("global_load"):
            self.cls = "vmem"
            self.defs = R[0]
            self.uses = set().union(*R[1:])
        elif mn.startswith("buffer_store") or mn.startswith("global_store"):
            self.cls = "vmem"
            self.uses = set().union(*R)
            if "x4" in mn or "x3" in mn:
                self.stdata = R[0] if mn.startswith("buffer") else R[1]
        elif mn.startswith("buffer_atomic"):
            self.cls = "vmem"
            self.uses = set().union(*R)
            self.defs = R[0] if "sc0" in text else set()
        elif mn.startswith("buffer_wbl2") or mn.startswith("buffer_inv"):
            self.cls = "vmem"
        elif mn.startswith("ds_read") or mn.startswith("ds_bpermute"):
            self.cls = "ds"
            self.defs = R[0]
            self.uses = set().union(*R[1:])
        elif mn.startswith("ds_"):
            self.cls = "ds"
            self.uses = set().union(*R)
        elif mn.startswith("s_"):
            self.cls = "salu"
            if mn.startswith(("s_cmp", "s_bitcmp", "s_cbranch", "s_branch", "s_waitcnt", "s_barrier", "s_sleep",
                              "s_setprio", "s_endpgm")):
                self.uses = set().union(*R) if R else set()
            else:
                self.defs = R[0] if R else set()
                self.uses = set().union(*R[1:]) if len(R) > 1 else set()
        else:
            raise ValueError("unknown instruction: " + text)


VALU_LIKE = ("valu", "trans", "dot", "permlane", "readlane")


def need(p, c):
    n = 0
    pv = {r for r in p.defs if r[0] in "va"}
    ps = {r for r in p.defs if r[0] == "s" or r[0] == "vcc"}
    cu, cd = c.uses, c.defs
    if p.cls in VALU_LIKE:
        if pv & cu:
            if c.dpp:
                n = max(n, 2)
            if c.cls == "readlane":
                n = max(n, 1)
            if c.cls == "permlane":
                n = max(n, 2)
            if c.cls == "mfma":
                n = max(n, 2)
            if p.cls == "trans":
                n = max(n, 1)
        if p.cls == "dot" and pv & (cu | cd):
            same = c.cls == "dot" and c.mn.replace("_dpp", "").replace("_e32", "") == p.mn.replace("_dpp", "").replace("_e32", "")
            if same and not (pv & c.srcab):
                pass
            else:
                n = max(n, 3)
        if ps & cu:
            if c.cls in VALU_LIKE or c.cls == "mfma":
                n = max(n, 4 if c.cls == "readlane" else 2)
            if c.cls == "vmem":
                n = max(n, 5)
            if c.cls == "salu":
                n = max(n, 1)
    if p.cls == "mfma":
        if c.cls == "mfma":
            if pv & c.srcab:
                n = max(n, 8)
            if pv & c.srcc and c.srcc != pv:
                n = max(n, 6)
        elif pv & (cu | cd):
            n = max(n, 8)
        if c.cls in VALU_LIKE and p.srcc & cd:
            n = max(n, 3)
    if p.stdata and p.stdata & cd:
        n = max(n, 2)
    return n


class Asm:
    def __init__(self):
        self.lines = []
        self.hist = []
        self.ninstr = 0

    def raw(self, s):
        self.lines.append(s)

    def comment(self, s):
        self.lines.append("    ; " + s)

    def label(self, name, pad=True):
        self.lines.append(name + ":")
        if pad:
            self("s_nop 4")

    def __call__(self, text):
        for t in text.split("\n"):
            t = t.strip()
            if not t or t.startswith(";"):
                continue
            ins = Ins(t)
            dist = 0
            req = 0
            for p in reversed(self.hist):
                req = max(req, need(p, ins) - dist)
                dist += p.states
                if dist >= 10:
                    break
            if req > 0:
                nop = Ins("s_nop %d" % (req - 1))
                self.lines.append("    " + nop.text)
                self.hist.append(nop)
                self.ninstr += 1
            self.lines.append("    " + t)
            self.hist.append(ins)
            self.ninstr += 1
            if len(self.hist) > 24:
                self.hist = self.hist[-16:]

    def text(self):
        return "\n".join(self.lines) + "\n"
```

```python
import sys
from asmlib import Asm

NAME = "gated_mix__gqa_block_cached__geglu_ffn__decode"

EPOCH = 0
QP = 0x10000
FP = 0x60000
ML = 0xA0000
ZB = 0x100000
YB = 0x200000
WS_BYTES = 0x400000
O_LDS, MLL, ZERO, Q_LDS, T_LDS, LDS_BYTES = 0, 1024, 1280, 1536, 1792, 2048
F2_WG0 = 200
SPIN = 60000

LOG2E = 0x3FB8AA3B
SCALE = 0x3DB504F3


def bitrev4(t):
    return ((t & 1) << 3) | ((t & 2) << 1) | ((t & 4) >> 1) | ((t & 8) >> 3)


def gen(P=16, stamps=0, pol="nt", wpol="nt", sleep=1, prefetch=1, hprio=1):
    A = Asm()
    hdr = open("cdna_kernels/%s.s.ref" % NAME).read().split("; Override")[0]
    A.raw(hdr.rstrip())
    A.raw(f"; @launch grid=(256,1,1) block=(512,1,1) lds={LDS_BYTES}")
    A.raw('.amdgcn_target "amdgcn-amd-amdhsa--gfx950"')
    A.raw(".text")
    A.raw(f".globl {NAME}_kernel")
    A.raw(".p2align 8")
    A.raw(f".type {NAME}_kernel,@function")
    A.raw(f"{NAME}_kernel:")

    def stamp(k):
        if stamps:
            A(f"s_memrealtime s[{84+2*k}:{85+2*k}]")

    def stamp_out(slots):
        if not stamps:
            return
        A("s_waitcnt lgkmcnt(0)")
        A("s_lshl_b32 s56, s2, 6")
        A("s_add_u32 s56, s56, 0x10000000")
        A("s_add_u32 s52, s28, s56")
        A("s_addc_u32 s53, s29, 0")
        A("s_mov_b32 s54, 64")
        A("s_mov_b32 s55, 0x20000")
        A("v_mov_b32 v2, 0")
        A("s_mov_b64 exec, 1")
        for k in slots:
            A(f"v_mov_b32 v16, s{84+2*k}")
            A(f"v_mov_b32 v17, s{85+2*k}")
            A(f"buffer_store_dwordx2 v[16:17], v2, s[52:55], 0 offen offset:{8*k}")
            A("s_nop 1")
        A("s_mov_b64 exec, -1")

    A("s_cmp_ge_u32 s2, 256")
    A("s_cbranch_scc1 L_end")
    A("s_load_dwordx16 s[4:19], s[0:1], 0")
    A("s_load_dwordx8 s[20:27], s[0:1], 64")
    A("s_load_dwordx2 s[28:29], s[0:1], 96")
    stamp(0)
    A("v_lshrrev_b32 v1, 6, v0")
    A("v_and_b32 v2, 15, v0")
    A("v_readfirstlane_b32 s3, v1")
    A("v_and_b32 v1, 63, v0")
    A("v_lshrrev_b32 v3, 4, v1")
    A("s_and_b32 s34, s2, 7")
    A("s_lshr_b32 s56, s2, 6")
    A("s_lshl_b32 s56, s56, 3")
    A("s_add_u32 s30, s34, s56")
    A("s_lshr_b32 s56, s2, 3")
    A("s_and_b32 s32, s56, 3")
    A("s_lshr_b32 s31, s56, 2")
    A("s_and_b32 s31, s31, 1")
    A("s_lshl_b32 s33, s31, 5")
    A("s_add_u32 s33, s33, s30")
    A("s_mov_b32 s35, 0x05040100")
    A("s_mov_b32 s36, 0x07060302")
    A("s_movk_i32 s37, 0xff")
    A("s_mov_b32 s43, 0x20000")
    A("s_mov_b32 s47, 0x20000")
    A("s_mov_b32 s51, 0x20000")
    A(f"s_mov_b32 s46, {WS_BYTES}")
    A("s_cmp_ge_u32 s3, 4")
    A("s_cbranch_scc1 L_stream")

    if hprio:
        A(f"s_setprio {hprio}")
    A("s_lshr_b32 s63, s2, 3")
    A("s_lshr_b32 s64, s2, 2")
    A("s_and_b32 s64, s64, 1")
    A("s_and_b32 s65, s2, 3")
    A("s_movk_i32 s56, 3456")
    A("s_lshl_b32 s57, s63, 7")
    A("s_movk_i32 s59, 128")
    A("s_movk_i32 s60, 4096")
    A("s_movk_i32 s61, 256")
    A("s_lshl_b32 s62, s63, 13")
    A("s_lshl_b32 s66, s64, 2")
    A("s_add_u32 s66, s66, s65")
    A("s_lshl_b32 s66, s66, 4")
    A("s_add_u32 s62, s62, s66")
    A(f"s_add_u32 s62, s62, {FP}")
    A(f"s_mov_b32 s42, {640*3456}")
    A("s_cmp_lg_u32 s3, 0")
    A("s_cbranch_scc1 L_h_notq")
    A("s_movk_i32 s56, 8192")
    A("s_lshl_b32 s57, s30, 8")
    A("s_lshl_b32 s66, s31, 7")
    A("s_add_u32 s57, s57, s66")
    A(f"s_mov_b32 s59, {32*4096}")
    A("s_movk_i32 s60, 64")
    A("s_movk_i32 s61, 16")
    A("s_lshl_b32 s62, s30, 12")
    A("s_add_u32 s62, s62, s66")
    A("s_lshl_b32 s66, s32, 8")
    A("s_add_u32 s62, s62, s66")
    A(f"s_add_u32 s62, s62, {QP}")
    A(f"s_mov_b32 s42, {640*8192}")
    A("s_mov_b32 s65, s32")
    A.label("L_h_notq", pad=False)
    A("s_mul_i32 s66, s65, 160")
    A("s_mul_i32 s66, s66, s56")
    A("s_add_u32 s57, s57, s66")
    A("s_mul_i32 s58, s65, 320")
    A("s_mul_i32 s67, s56, 25")
    A("v_lshlrev_b32 v5, 3, v3")
    A("v_mul_lo_u32 v5, v5, s56")
    A("v_lshl_add_u32 v5, v2, 3, v5")
    A("v_lshrrev_b32 v6, 3, v2")
    A("v_mul_u32_u24 v6, 1280, v6")
    A("v_lshl_add_u32 v6, v3, 4, v6")
    A("v_mov_b32 v7, 0")
    A("s_waitcnt lgkmcnt(0)")
    A("s_mov_b32 s44, s28")
    A("s_mov_b32 s45, s29")
    A("s_mov_b32 s48, s4")
    A("s_mov_b32 s49, s5")
    A("s_movk_i32 s50, 2560")
    A("s_cmp_eq_u32 s64, 0")
    A("s_cselect_b32 s40, s16, s18")
    A("s_cselect_b32 s41, s17, s19")
    A("s_cmp_eq_u32 s3, 0")
    A("s_cselect_b32 s40, s10, s40")
    A("s_cselect_b32 s41, s11, s41")
    A("s_cmp_ge_u32 s3, 2")
    A("s_cbranch_scc1 L_h_idle0")
    A("s_cmp_eq_u32 s3, 0")
    A("s_cselect_b32 s66, 0, s2")
    A("s_cmp_ge_u32 s66, 216")
    A("s_cbranch_scc1 L_h_idle0")
    W0, X0, FR0, AC0 = 16, 96, 116, 132
    A(f"buffer_load_dword v4, v7, s[44:47], 0 offen offset:{EPOCH} sc1")
    for ks in range(5):
        A(f"buffer_load_dwordx4 v[{X0+4*ks}:{X0+4*ks+3}], v6, s[48:51], s58 offen offset:{64*ks}")
    for ks in range(5):
        for e in range(8):
            r = W0 + 2 * (8 * ks + e)
            A(f"buffer_load_dwordx2 v[{r}:{r+1}], v5, s[40:43], s57 offen {wpol}")
            A(f"s_add_u32 s57, s57, {'s56' if e < 7 else 's67'}")
    A("s_barrier")
    A("v_lshrrev_b32 v8, 1, v3")
    A("v_mul_lo_u32 v8, v8, s59")
    A("v_lshrrev_b32 v9, 3, v2")
    A("v_mul_lo_u32 v9, v9, s60")
    A("v_add_u32 v8, v8, v9")
    A("v_bfe_u32 v9, v2, 1, 2")
    A("v_mul_lo_u32 v9, v9, s61")
    A("v_add_u32 v8, v8, v9")
    A("v_and_b32 v9, 1, v2")
    A("v_lshlrev_b32 v9, 1, v9")
    A("v_and_b32 v10, 1, v3")
    A("v_add_u32 v9, v9, v10")
    A("v_lshl_add_u32 v8, v9, 10, v8")
    A("v_cmp_eq_u32 s[68:69], 1, v10")
    for ks in range(5):
        A(f"s_waitcnt vmcnt({40-8*(ks+1)})")
        for c in range(4):
            for d in range(4):
                lo = W0 + 2 * (8 * ks + 2 * d) + (c >> 1)
                hi = W0 + 2 * (8 * ks + 2 * d + 1) + (c >> 1)
                A(f"v_perm_b32 v{FR0+4*c+d}, v{hi}, v{lo}, {'s36' if c & 1 else 's35'}")
        for c in range(4):
            cc = "0" if ks == 0 else f"v[{AC0+4*c}:{AC0+4*c+3}]"
            A(f"v_mfma_f32_16x16x32_bf16 v[{AC0+4*c}:{AC0+4*c+3}], v[{X0+4*ks}:{X0+4*ks+3}], v[{FR0+4*c}:{FR0+4*c+3}], {cc}")
    A("v_add_u32 v4, 1, v4")
    A("v_mov_b32 v13, v4")
    A("v_mov_b32 v15, v4")
    A(f"v_cndmask_b32 v12, v{AC0}, v{AC0+8}, s[68:69]")
    A(f"v_cndmask_b32 v14, v{AC0+4}, v{AC0+12}, s[68:69]")
    A("v_bfi_b32 v12, s37, v4, v12")
    A("v_bfi_b32 v14, s37, v4, v14")
    A("buffer_store_dwordx4 v[12:15], v8, s[44:47], s62 offen sc1")
    A("s_cmp_lg_u32 s3, 0")
    A("s_cbranch_scc1 L_h_bar1")
    A("v_lshlrev_b32 v9, 4, v1")
    A("s_lshl_b32 s56, s33, 12")
    A(f"s_add_u32 s56, s56, {QP}")
    A(f"s_mov_b32 s57, {SPIN}")
    QL = 148

    def check(regs, bad, tmp):
        for n, r in enumerate(regs):
            A(f"v_bitop3_b32 v{tmp}, v{r}, v{r+2}, v4 bitop3:0x7e")
            A(f"v_bitop3_b32 v{tmp+1}, v{r+1}, v{r+3}, v4 bitop3:0x7e")
            if n == 0:
                A(f"v_and_or_b32 v{bad}, v{tmp}, s37, v{tmp+1}")
            else:
                A(f"v_and_or_b32 v{tmp}, v{tmp}, s37, v{tmp+1}")
                A(f"v_or_b32 v{bad}, v{bad}, v{tmp}")

    def poll(lbl, regs, voff, soff, imm, bad, tmp, cnt, width=4, lanes=None):
        A.label(lbl)
        for n, r in enumerate(regs):
            A(f"buffer_load_dwordx4 v[{r}:{r+3}], {voff}, s[44:47], {soff} offen offset:{imm[n]} sc1")
        A("s_waitcnt vmcnt(0)")
        check(regs, bad, tmp)
        if lanes is not None:
            A(f"v_cndmask_b32 v{bad}, 0, v{bad}, {lanes}")
        A(f"v_cmp_ne_u32 vcc, 0, v{bad}")
        A(f"s_cbranch_vccz {lbl}_ok")
        A(f"s_sleep {sleep}")
        A(f"s_sub_u32 {cnt}, {cnt}, 1")
        A(f"s_cbranch_scc0 {lbl}")
        A.label(lbl + "_ok", pad=False)

    poll("L_pq", [QL + 4 * i for i in range(4)], "v9", "s56", [1024 * i for i in range(4)], 10, 164, "s57")
    for n in range(8):
        A(f"v_and_b32 v{QL+2*n}, 0xffffff00, v{QL+2*n}")
    for n in range(4):
        A(f"v_permlane32_swap_b32 v{QL+2*n}, v{QL+2*(n+4)}")
    for n in range(4):
        A(f"v_add_f32 v{QL+2*n}, v{QL+2*n}, v{QL+2*(n+4)}")
    for n in range(2):
        A(f"v_permlane16_swap_b32 v{QL+2*n}, v{QL+2*(n+2)}")
    for n in range(2):
        A(f"v_add_f32 v{QL+2*n}, v{QL+2*n}, v{QL+2*(n+2)}")
    A(f"v_cvt_pk_bf16_f32 v10, v{QL}, v{QL+2}")
    A("v_lshlrev_b32 v9, 4, v2")
    A("v_lshl_add_u32 v9, v3, 2, v9")
    A(f"ds_write_b32 v9, v10 offset:{Q_LDS}")
    A(f"ds_write_b32 v7, v4 offset:{T_LDS}")
    A("s_waitcnt lgkmcnt(0)")
    A("s_branch L_h_bar1")

    A.label("L_h_idle0")
    A("s_cmp_lg_u32 s3, 3")
    A("s_cbranch_scc1 L_h_noinit")
    A("v_lshlrev_b32 v9, 3, v1")
    A("v_mov_b32 v10, 0")
    A("v_mov_b32 v11, 0")
    A(f"ds_write_b64 v9, v[10:11] offset:{MLL}")
    A("s_waitcnt lgkmcnt(0)")
    A.label("L_h_noinit", pad=False)
    A("s_barrier")
    if prefetch:
        A("s_cmp_lg_u32 s3, 2")
        A("s_cbranch_scc1 L_h_bar1")
        A("s_getpc_b64 s[48:49]")
        A.raw("L_pc:")
        A(f"s_sub_u32 s48, s48, L_pc-{NAME}_kernel")
        A("s_subb_u32 s49, s49, 0")
        A(f"s_mov_b32 s50, L_code_end-{NAME}_kernel")
        A("v_lshlrev_b32 v9, 7, v1")
        for i in range(3):
            A(f"s_mov_b32 s56, {8192*i}")
            A(f"buffer_load_dword v{16+i}, v9, s[48:51], s56 offen")
    A.label("L_h_bar1")
    A("s_barrier")
    A(f"ds_read_b32 v4, v7 offset:{T_LDS}")
    F0, G0 = 16, 176
    A(f"s_mul_i32 s56, s30, {128*1280}")
    A("s_add_u32 s40, s12, s56")
    A("s_addc_u32 s41, s13, 0")
    A(f"s_mov_b32 s42, {128*1280}")
    A("v_mul_u32_u24 v5, 10240, v3")
    A("s_lshl_b32 s56, s3, 6")
    A("s_add_u32 s56, s56, 1024")
    A("v_lshl_add_u32 v6, v2, 2, v5")
    A("v_add_u32 v6, s56, v6")
    A("s_lshl_b32 s56, s3, 8")
    A("v_lshl_add_u32 v5, v2, 4, v5")
    A("v_add_u32 v5, s56, v5")
    A("s_waitcnt vmcnt(0)")

    def wload(ks, st):
        for half in range(2):
            A(f"s_mov_b32 s56, {ks*40960 + half*5120}")
            for e4 in range(4):
                e = half * 4 + e4
                A(f"buffer_load_dwordx4 v[{st+4*e}:{st+4*e+3}], v5, s[40:43], s56 offen offset:{e4*1280} {wpol}")
                A(f"buffer_load_dword v{st+32+e}, v6, s[40:43], s56 offen offset:{e4*1280} {wpol}")

    def wperm(st, dst):
        for c in range(8):
            for d in range(4):
                A(f"v_perm_b32 v{dst+4*c+d}, v{st+4*(2*d+1)+(c>>1)}, v{st+4*(2*d)+(c>>1)}, {'s36' if c & 1 else 's35'}")
        for cc in range(2):
            for d in range(4):
                A(f"v_perm_b32 v{dst+32+4*cc+d}, v{st+32+2*d+1}, v{st+32+2*d}, {'s36' if cc else 's35'}")

    wload(0, G0)
    wload(1, G0 + 40)
    A("s_waitcnt vmcnt(16)")
    wperm(G0, F0)
    wload(2, G0)
    A("s_waitcnt vmcnt(16)")
    wperm(G0 + 40, F0 + 40)
    wload(3, G0 + 40)
    A("s_waitcnt vmcnt(16)")
    wperm(G0, F0 + 80)
    A(f"s_sub_u32 s70, s2, {F2_WG0}")
    A("s_cmp_ge_u32 s70, 54")
    A("s_cbranch_scc1 L_h_nof2a")
    A("s_waitcnt vmcnt(0)")
    wperm(G0 + 40, F0 + 120)
    A("s_mul_i32 s56, s70, 40960")
    A("s_add_u32 s40, s20, s56")
    A("s_addc_u32 s41, s21, 0")
    A("s_mov_b32 s42, 40960")
    wload(0, G0)
    A("s_waitcnt vmcnt(0) lgkmcnt(0)")
    wperm(G0, G0 + 40)
    A("v_lshlrev_b32 v9, 4, v1")
    A("s_lshl_b32 s56, s70, 12")
    A(f"s_add_u32 s56, s56, {FP}")
    A(f"s_mov_b32 s57, {SPIN}")
    GL = G0
    poll("L_pf", [GL + 4 * i for i in range(4)], "v9", "s56", [1024 * i for i in range(4)], 10, 192, "s57")
    val = [GL + 2 * n for n in range(8)]
    tmp = [GL + 2 * n + 1 for n in range(8)]
    for r in val:
        A(f"v_and_b32 v{r}, 0xffffff00, v{r}")
    for r in val:
        A(f"v_add_f32_dpp v{r}, v{r}, v{r} quad_perm:[1,0,3,2] row_mask:0xf bank_mask:0xf")
    for r in val:
        A(f"v_add_f32_dpp v{r}, v{r}, v{r} quad_perm:[2,3,0,1] row_mask:0xf bank_mask:0xf")
    for n in range(0, 8, 2):
        A(f"v_cvt_pk_bf16_f32 v{tmp[n]}, v{val[n]}, v{val[n+1]}")
    for n in range(0, 8, 2):
        A(f"v_lshlrev_b32 v{val[n]}, 16, v{tmp[n]}")
        A(f"v_and_b32 v{val[n+1]}, 0xffff0000, v{tmp[n]}")
    T2 = [192 + n for n in range(8)]
    U = [200 + n for n in range(8)]
    A("s_mov_b32 s56, 0x3d372713")
    A("s_mov_b32 s57, 0xc0135761")
    for n in range(8):
        A(f"v_mov_b32_dpp v{U[n]}, v{val[n]} row_shl:4 row_mask:0xf bank_mask:0xf bound_ctrl:0")
    for n in range(8):
        A(f"v_mul_f32 v{tmp[n]}, v{val[n]}, v{val[n]}")
    for n in range(8):
        A(f"v_mul_f32 v{tmp[n]}, v{tmp[n]}, v{val[n]}")
    for n in range(8):
        A(f"v_fma_f32 v{tmp[n]}, v{tmp[n]}, s56, v{val[n]}")
    for n in range(8):
        A(f"v_mul_f32 v{tmp[n]}, s57, v{tmp[n]}")
    for n in range(8):
        A(f"v_exp_f32 v{tmp[n]}, v{tmp[n]}")
    for n in range(8):
        A(f"v_add_f32 v{tmp[n]}, 1.0, v{tmp[n]}")
    for n in range(8):
        A(f"v_rcp_f32 v{tmp[n]}, v{tmp[n]}")
    for n in range(8):
        A(f"v_mul_f32 v{val[n]}, v{val[n]}, v{tmp[n]}")
    for n in range(0, 8, 2):
        A(f"v_cvt_pk_bf16_f32 v{tmp[n]}, v{val[n]}, v{val[n+1]}")
    for n in range(0, 8, 2):
        A(f"v_lshlrev_b32 v{val[n]}, 16, v{tmp[n]}")
        A(f"v_and_b32 v{val[n+1]}, 0xffff0000, v{tmp[n]}")
    for n in range(8):
        A(f"v_mul_f32 v{val[n]}, v{val[n]}, v{U[n]}")
    for n in range(0, 8, 2):
        A(f"v_cvt_pk_bf16_f32 v{12+n//2}, v{val[n]}, v{val[n+1]}")
    for d in range(4):
        A(f"v_mov_b32_dpp v{12+d}, v{12+d} row_shr:4 row_mask:0xf bank_mask:0xa")
    for c in range(10):
        A(f"v_mfma_f32_16x16x32_bf16 v[{G0+4*c}:{G0+4*c+3}], v[12:15], v[{G0+40+4*c}:{G0+40+4*c+3}], 0")
    A("v_lshrrev_b32 v8, 1, v3")
    A("v_mul_u32_u24 v8, 80, v8")
    A("v_and_b32 v10, 1, v3")
    A("v_cmp_eq_u32 s[68:69], 1, v10")
    A("s_lshl_b32 s56, s3, 4")
    A("v_add3_u32 v9, v8, v2, s56")
    A("v_lshlrev_b32 v9, 12, v9")
    A("v_lshl_add_u32 v9, v10, 5, v9")
    A("s_lshl_b32 s56, s3, 2")
    A("s_add_u32 s56, s56, 64")
    A("v_lshrrev_b32 v11, 2, v2")
    A("v_add3_u32 v8, v8, v11, s56")
    A("v_lshlrev_b32 v8, 12, v8")
    A("v_and_b32 v11, 3, v2")
    A("v_lshl_add_u32 v8, v11, 4, v8")
    A("s_lshl_b32 s56, s70, 6")
    A(f"s_add_u32 s56, s56, {ZB}")
    PKZ = G0 + 40
    for q in range(3):
        A(f"v_mov_b32 v{PKZ+4*q+1}, v4")
        A(f"v_mov_b32 v{PKZ+4*q+3}, v4")
    for c in range(4):
        A(f"v_cndmask_b32 v{PKZ+2*c}, v{G0+4*c}, v{G0+4*(c+4)}, s[68:69]")
    for c in range(4):
        A(f"v_bfi_b32 v{PKZ+2*c}, s37, v4, v{PKZ+2*c}")
    A(f"v_bfi_b32 v{PKZ+8}, s37, v4, v{G0+32}")
    A(f"v_bfi_b32 v{PKZ+10}, s37, v4, v{G0+36}")
    A(f"buffer_store_dwordx4 v[{PKZ}:{PKZ+3}], v9, s[44:47], s56 offen sc1")
    A(f"buffer_store_dwordx4 v[{PKZ+4}:{PKZ+7}], v9, s[44:47], s56 offen offset:16 sc1")
    A(f"buffer_store_dwordx4 v[{PKZ+8}:{PKZ+11}], v8, s[44:47], s56 offen sc1")
    A("s_branch L_h_nof2b")
    A.label("L_h_nof2a")
    A("s_waitcnt vmcnt(0) lgkmcnt(0)")
    wperm(G0 + 40, F0 + 120)
    A.label("L_h_nof2b")
    stamp(6)
    A("s_cmp_eq_u32 s3, 3")
    A("s_cselect_b32 s71, s2, 255")
    A("s_cmp_ge_u32 s71, 160")
    A("s_cbranch_scc1 L_h_nored")
    A("s_cmp_ge_u32 s2, 80")
    A("s_cselect_b32 s56, 1280, 0")
    A("s_mov_b32 s48, s4")
    A("s_mov_b32 s49, s5")
    A("s_movk_i32 s50, 2560")
    A("s_mov_b32 s52, s22")
    A("s_mov_b32 s53, s23")
    A("s_movk_i32 s54, 1280")
    A("s_mov_b32 s55, 0x20000")
    A("v_lshlrev_b32 v9, 2, v1")
    for t in range(5):
        A(f"buffer_load_dword v{192+t}, v9, s[48:51], s56 offen offset:{256*t}")
        A(f"buffer_load_dword v{197+t}, v9, s[52:55], 0 offen offset:{256*t}")
    A("v_mov_b32 v5, 0")
    A("s_waitcnt vmcnt(0)")
    for t in range(5):
        A(f"v_lshlrev_b32 v202, 16, v{192+t}")
        A(f"v_lshlrev_b32 v203, 16, v{197+t}")
        A(f"v_and_b32 v204, 0xffff0000, v{192+t}")
        A(f"v_and_b32 v205, 0xffff0000, v{197+t}")
        A("v_mul_f32 v202, v202, v203")
        A("v_mul_f32 v204, v204, v205")
        A("v_cvt_pk_bf16_f32 v202, v202, v204")
        A("v_lshlrev_b32 v203, 16, v202")
        A("v_and_b32 v204, 0xffff0000, v202")
        A("v_add_f32 v5, v5, v203")
        A("v_add_f32 v5, v5, v204")

    def allreduce(op, r, t, levels=(1, 2, 4, 8, 16, 32)):
        for lv in levels:
            if lv == 1:
                A(f"{op}_dpp v{r}, v{r}, v{r} quad_perm:[1,0,3,2] row_mask:0xf bank_mask:0xf")
            elif lv == 2:
                A(f"{op}_dpp v{r}, v{r}, v{r} quad_perm:[2,3,0,1] row_mask:0xf bank_mask:0xf")
            elif lv == 4:
                A(f"{op}_dpp v{r}, v{r}, v{r} row_ror:4 row_mask:0xf bank_mask:0xf")
            elif lv == 8:
                A(f"{op}_dpp v{r}, v{r}, v{r} row_ror:8 row_mask:0xf bank_mask:0xf")
            else:
                A(f"v_mov_b32 v{t}, v{r}")
                A(f"v_permlane{lv}_swap_b32 v{r}, v{t}")
                A(f"{op} v{r}, v{r}, v{t}")

    allreduce("v_add_f32", 5, 202, levels=(1, 2, 8, 4, 16, 32))
    A("v_cvt_pk_bf16_f32 v5, v5, v5")
    A("v_and_b32 v5, 0xffff0000, v5")
    A(f"v_mul_f32 v5, 0x{LOG2E ^ 0x80000000:08x}, v5")
    A("v_exp_f32 v5, v5")
    A("v_add_f32 v5, 1.0, v5")
    A("v_rcp_f32 v5, v5")
    A("v_cvt_pk_bf16_f32 v5, v5, v5")
    A("v_and_b32 v5, 0xffff0000, v5")
    A("v_sub_f32 v202, 1.0, v5")
    A("v_cvt_pk_bf16_f32 v202, v202, v202")
    A("v_and_b32 v202, 0xffff0000, v202")
    A("v_lshlrev_b32 v9, 4, v1")
    A("s_lshl_b32 s56, s2, 12")
    A(f"s_add_u32 s56, s56, {ZB}")
    A(f"s_mov_b32 s57, {SPIN}")
    A("v_cmp_gt_u32 s[68:69], 24, v1")
    A.label("L_pz")
    for n in range(4):
        A(f"buffer_load_dwordx4 v[{G0+4*n}:{G0+4*n+3}], v9, s[44:47], s56 offen offset:{1024*n} sc1")
    A("s_waitcnt vmcnt(0)")
    check([G0 + 12], 11, 204)
    A("v_cndmask_b32 v11, 0, v11, s[68:69]")
    check([G0, G0 + 4, G0 + 8], 10, 204)
    A("v_or_b32 v10, v10, v11")
    A("v_cmp_ne_u32 vcc, 0, v10")
    A("s_cbranch_vccz L_pz_ok")
    A("s_sleep 8")
    A("s_sub_u32 s57, s57, 1")
    A("s_cbranch_scc0 L_pz")
    A.label("L_pz_ok", pad=False)
    for n in range(8):
        A(f"v_and_b32 v{G0+2*n}, 0xffffff00, v{G0+2*n}")
    A(f"v_cndmask_b32 v{G0+12}, 0, v{G0+12}, s[68:69]")
    A(f"v_cndmask_b32 v{G0+14}, 0, v{G0+14}, s[68:69]")
    for k in range(2):
        A(f"v_add_f32 v{6+k}, v{G0+2*k}, v{G0+4+2*k}")
        A(f"v_add_f32 v{204+k}, v{G0+8+2*k}, v{G0+12+2*k}")
    for k in range(2):
        A(f"v_add_f32 v{6+k}, v{6+k}, v{204+k}")
    for k in range(2):
        allreduce("v_add_f32", 6 + k, 204 + k, levels=(8, 4, 16, 32))
    A("v_cvt_pk_bf16_f32 v204, v6, v7")
    A("v_lshlrev_b32 v6, 16, v204")
    A("v_and_b32 v7, 0xffff0000, v204")
    A("v_mul_f32 v6, v6, v202")
    A("v_mul_f32 v7, v7, v202")
    A("v_cvt_pk_bf16_f32 v204, v6, v7")
    A("v_lshlrev_b32 v6, 16, v204")
    A("v_and_b32 v7, 0xffff0000, v204")
    A.label("L_h_nored")
    A("v_and_b32 v8, 3, v1")
    A("v_lshlrev_b32 v8, 4, v8")
    A(f"s_mov_b32 s57, {SPIN*16}")
    A.label("L_pl")
    A(f"ds_read_b128 v[232:235], v8 offset:{MLL}")
    A("s_waitcnt lgkmcnt(0)")
    A("v_cmp_ne_u32 vcc, 1, v234")
    A("s_cbranch_vccz L_pl_ok")
    A("s_sleep 4")
    A("s_sub_u32 s57, s57, 1")
    A("s_cbranch_scc0 L_pl")
    A.label("L_pl_ok", pad=False)
    A(f"s_mov_b32 s58, 0x{LOG2E:08x}")

    def stats(mr, lr, M, Lr, t):
        A(f"v_mov_b32 v{M}, v{mr}")
        allreduce("v_max_f32", M, t, levels=(1, 2))
        A(f"v_sub_f32 v{t}, v{mr}, v{M}")
        A(f"v_mul_f32 v{t}, s58, v{t}")
        A(f"v_exp_f32 v{t}, v{t}")
        A(f"v_mul_f32 v{Lr}, v{lr}, v{t}")
        allreduce("v_add_f32", Lr, t, levels=(1, 2))

    stats(232, 233, 236, 238, 240)
    A("v_add_u32 v238, 0x80, v238")
    A("v_bfi_b32 v236, s37, v4, v236")
    A("v_bfi_b32 v238, s37, v4, v238")
    A("v_mov_b32 v237, v4")
    A("v_mov_b32 v239, v4")
    A("s_lshl_b32 s56, s33, 6")
    A(f"s_add_u32 s56, s56, {ML}")
    A("s_cmp_lg_u32 s3, 0")
    A("s_cbranch_scc1 L_h_nopub")
    A("s_lshl_b32 s59, s32, 4")
    A("v_mov_b32 v9, s59")
    A("s_mov_b64 exec, 1")
    A("buffer_store_dwordx4 v[236:239], v9, s[44:47], s56 offen sc1")
    A("s_mov_b64 exec, -1")
    A.label("L_h_nopub")
    A(f"s_mov_b32 s57, {SPIN}")
    old_sleep = sleep
    poll("L_pm", [240], "v8", "s56", [0], 10, 244, "s57")
    A("v_and_b32 v240, 0xffffff00, v240")
    A("v_and_b32 v242, 0xffffff00, v242")
    stats(240, 242, 241, 243, 244)
    A("v_rcp_f32 v243, v243")
    A("v_sub_f32 v244, v232, v241")
    A("v_mul_f32 v244, s58, v244")
    A("v_exp_f32 v244, v244")
    A("v_mul_f32 v244, v244, v243")
    for r in range(4):
        A(f"v_readlane_b32 s{60+r}, v244, {r}")
    A("v_and_b32 v8, 3, v2")
    A("v_lshlrev_b32 v8, 8, v8")
    A("v_lshl_add_u32 v8, v3, 4, v8")
    A("v_lshlrev_b32 v9, 4, v3")
    A(f"v_add_u32 v9, {ZERO}, v9")
    A("v_lshrrev_b32 v10, 2, v2")
    for gp in range(4):
        A(f"v_cmp_eq_u32 vcc, {gp}, v10")
        A(f"v_cndmask_b32 v{224+gp}, v9, v8, vcc")
    A("s_mul_i32 s56, s31, 80")
    A("s_lshl_b32 s57, s3, 4")
    A("s_add_u32 s57, s57, s56")
    A("v_add_u32 v228, s57, v2")
    A("v_lshlrev_b32 v228, 13, v228")
    A("v_lshl_add_u32 v228, v3, 4, v228")
    A("s_lshl_b32 s57, s3, 2")
    A("s_add_u32 s57, s57, s56")
    A("s_add_u32 s57, s57, 64")
    A("v_add_u32 v229, s57, v10")
    A("v_lshlrev_b32 v229, 13, v229")
    A("v_and_b32 v11, 3, v2")
    A("v_lshl_add_u32 v229, v11, 4, v229")
    A("s_lshl_b32 s56, s34, 4")
    A("s_lshr_b32 s57, s30, 3")
    A("s_lshl_b32 s57, s57, 2")
    A("s_add_u32 s56, s56, s57")
    A("s_add_u32 s56, s56, s32")
    A("s_lshl_b32 s56, s56, 6")
    A(f"s_add_u32 s72, s56, {YB}")
    for r in (9, 11, 13, 15):
        A(f"v_mov_b32 v{r}, v4")
    A("v_lshlrev_b32 v230, 4, v1")
    A("s_lshl_b32 s73, s2, 13")
    A(f"s_add_u32 s73, s73, {YB}")
    A("s_add_u32 s74, s73, 4096")
    A("s_mov_b32 s52, s24")
    A("s_mov_b32 s53, s25")
    A("s_movk_i32 s54, 2560")
    A("s_mov_b32 s55, 0x20000")
    A("s_lshl_b32 s75, s2, 4")
    A("v_lshlrev_b32 v231, 2, v1")
    stamp(4)
    A("s_barrier")
    AB, ACC = G0, G0 + 32

    def aread(ks):
        for gp in range(4):
            r = AB + (ks & 1) * 16 + 4 * gp
            A(f"ds_read_b128 v[{r}:{r+3}], v{224+gp} offset:{O_LDS + 64*ks}")

    aread(0)
    aread(1)
    for ks in range(4):
        A(f"s_waitcnt lgkmcnt({4 if ks < 3 else 0})")
        a = AB + (ks & 1) * 16
        order = [0, 1, 8, 9, 2, 3, 4, 5, 6, 7]
        for c in order:
            acc = ACC + 4 * (c & 1) + (8 if c >= 8 else 0)
            av = a + 4 * (c >> 1) if c < 8 else a
            first = ks == 0 and c in (0, 1, 8, 9)
            cc = "0" if first else f"v[{acc}:{acc+3}]"
            f = F0 + 40 * ks + 4 * c
            A(f"v_mfma_f32_16x16x32_bf16 v[{acc}:{acc+3}], v[{av}:{av+3}], v[{f}:{f+3}], {cc}")
        if ks < 2:
            aread(ks + 2)
    outs = [12, 14, 8, 10]
    accs = [ACC + 8, ACC + 12, ACC, ACC + 4]
    for o, ac in zip(outs, accs):
        A(f"v_mul_f32 v{o}, s60, v{ac}")
    for r in range(1, 4):
        for o, ac in zip(outs, accs):
            A(f"v_fma_f32 v{o}, v{ac+r}, s{60+r}, v{o}")
    for o in outs:
        A(f"v_bfi_b32 v{o}, s37, v4, v{o}")
    A("buffer_store_dwordx4 v[8:11], v228, s[44:47], s72 offen sc1")
    A("s_mov_b64 exec, 0xffff")
    A("buffer_store_dwordx4 v[12:15], v229, s[44:47], s72 offen sc1")
    A("s_mov_b64 exec, -1")
    stamp(5)
    A("s_cmp_ge_u32 s71, 160")
    A("s_cbranch_scc1 L_h_done")
    A("s_mov_b32 s76, 0")
    A(f"s_mov_b32 s57, {SPIN}")
    YL = F0
    A.label("L_py")
    for i in range(8):
        A(f"s_bitcmp1_b32 s76, {i}")
        A(f"s_cbranch_scc1 L_py_l{i}")
        A(f"buffer_load_dwordx4 v[{YL+4*i}:{YL+4*i+3}], v230, s[44:47], {'s73' if i < 4 else 's74'} offen offset:{1024*(i&3)} sc1")
        A.label(f"L_py_l{i}", pad=False)
    A("s_waitcnt vmcnt(0)")
    for i in range(8):
        A(f"s_bitcmp1_b32 s76, {i}")
        A(f"s_cbranch_scc1 L_py_c{i}")
        check([YL + 4 * i], 10, 48)
        A("v_cmp_ne_u32 vcc, 0, v10")
        A(f"s_cbranch_vccnz L_py_c{i}")
        A(f"s_bitset1_b32 s76, {i}")
        A(f"v_and_b32 v{YL+4*i}, 0xffffff00, v{YL+4*i}")
        A(f"v_and_b32 v{YL+4*i+2}, 0xffffff00, v{YL+4*i+2}")
        A.label(f"L_py_c{i}", pad=False)
    A("s_cmp_eq_u32 s76, 0xff")
    A("s_cbranch_scc1 L_py_ok")
    if sleep:
        A(f"s_sleep {sleep}")
    A("s_sub_u32 s57, s57, 1")
    A("s_cbranch_scc0 L_py")
    A.label("L_py_ok", pad=False)
    for step in (1, 2, 4):
        for i in range(0, 8, 2 * step):
            for k in (0, 2):
                A(f"v_add_f32 v{YL+4*i+k}, v{YL+4*i+k}, v{YL+4*(i+step)+k}")
    r0, r1 = YL, YL + 2
    for ctrl in ("row_ror:8", "row_ror:4"):
        for r in (r0, r1):
            A(f"v_add_f32_dpp v{r}, v{r}, v{r} {ctrl} row_mask:0xf bank_mask:0xf")
    A(f"v_permlane32_swap_b32 v{r0}, v{r1}")
    A(f"v_add_f32 v{r0}, v{r0}, v{r1}")
    A(f"v_mov_b32 v{r1}, v{r0}")
    A(f"v_permlane16_swap_b32 v{r0}, v{r1}")
    A(f"v_add_f32 v{r0}, v{r0}, v{r1}")
    A(f"v_mov_b32 v{r1}, v{r0}")
    A(f"v_permlane32_swap_b32 v{r0}, v{r1}")
    A(f"v_cvt_pk_bf16_f32 v10, v{r0}, v{r1}")
    A("v_lshlrev_b32 v8, 16, v10")
    A("v_and_b32 v9, 0xffff0000, v10")
    A("v_mul_f32 v8, v8, v5")
    A("v_mul_f32 v9, v9, v5")
    A("v_cvt_pk_bf16_f32 v10, v8, v9")
    A("v_lshlrev_b32 v8, 16, v10")
    A("v_and_b32 v9, 0xffff0000, v10")
    A("v_add_f32 v8, v8, v6")
    A("v_add_f32 v9, v9, v7")
    A("v_cvt_pk_bf16_f32 v10, v8, v9")
    A("s_mov_b64 exec, 15")
    A("buffer_store_dword v10, v231, s[52:55], s75 offen")
    A("s_cmp_lg_u32 s2, 0")
    A("s_cbranch_scc1 L_h_done")
    A("s_mov_b64 exec, 1")
    A(f"buffer_store_dword v4, v231, s[44:47], 0 offen offset:{EPOCH} sc1")
    A.label("L_h_done", pad=False)
    if stamps:
        A("s_mov_b64 exec, -1")
        A("s_waitcnt vmcnt(0)")
        stamp(7)
        A("s_cmp_lg_u32 s3, 3")
        A("s_cbranch_scc1 L_end")
        stamp_out([0, 4, 5, 6, 7])
    A("s_endpgm")

    A.raw(".p2align 6")
    A.label("L_stream", pad=False)
    A("s_sub_u32 s3, s3, 4")
    A("s_lshl_b32 s56, s33, 2")
    A("s_add_u32 s56, s56, s32")
    A("s_lshl_b32 s56, s56, 19")
    A("s_lshl_b32 s57, s3, 12")
    A("v_lshlrev_b32 v4, 4, v1")
    A("v_add_u32 v1, s57, v4")
    A("v_and_b32 v4, 2, v0")
    A("v_cmp_ne_u32 s[80:81], 0, v4")
    A("v_and_b32 v4, 1, v0")
    A("v_cmp_ne_u32 s[82:83], 0, v4")
    A("s_mov_b32 s42, 0x80000")
    A("s_waitcnt lgkmcnt(0)")
    A("s_add_u32 s40, s6, s56")
    A("s_addc_u32 s41, s7, 0")
    A("s_add_u32 s48, s8, s56")
    A("s_addc_u32 s49, s9, 0")
    RING, SC, AO = 64, 8, 16

    def issue(pc, sreg):
        for t in range(4):
            r = RING + 16 * pc + 4 * t
            A(f"buffer_load_dwordx4 v[{r}:{r+3}], v1, s[40:43], {sreg} offen offset:{1024*t} {pol}")

    A("s_barrier")
    for pc in range(8):
        if 4 * pc >= P:
            A(f"s_waitcnt vmcnt({P-4})")
        A(f"s_mov_b32 s58, {16384*pc}")
        issue(pc, "s58")
    for r in range(8):
        A(f"v_mov_b32 v{AO+r}, 0")
    A("v_lshlrev_b32 v24, 4, v2")
    A("s_barrier")
    A(f"ds_read_b128 v[4:7], v24 offset:{Q_LDS}")
    stamp(1)
    A("s_mov_b32 s59, 0")
    A(f"s_mov_b32 s60, {8*16384}")
    A("s_waitcnt lgkmcnt(0)")

    def pace_issue(pc):
        if P <= 28:
            A(f"s_waitcnt vmcnt({P-4})")
        A(f"s_add_u32 s58, s60, {16384*pc}")
        issue(pc, "s58")

    A.raw(".p2align 6")
    A.label("L_kloop")
    A("s_cmp_eq_u32 s59, 3")
    A("s_cselect_b32 s40, s48, s40")
    A("s_cselect_b32 s41, s49, s41")
    A("s_cselect_b32 s60, 0, s60")
    for r in range(6):
        A(f"v_mov_b32 v{SC+r}, v{SC+r+2}")
    BR, CR = 32, 36
    for pc in range(8):
        a = 24 + 4 * (pc & 1)
        if P > 28:
            A("s_waitcnt vmcnt(28)")
        for d in range(4):
            for t in range(4):
                r = RING + 16 * pc + 4 * t + d
                if d == 0:
                    A(f"v_dot2_f32_bf16 v{a+t}, v{r}, v{4+d}, 0")
                else:
                    A(f"v_dot2c_f32_bf16 v{a+t}, v{r}, v{4+d}")
        pace_issue(pc)
        A(f"v_add_f32_dpp v{a}, v{a}, v{a} row_ror:8 row_mask:0xf bank_mask:0x3")
        A(f"v_add_f32_dpp v{a+2}, v{a+2}, v{a+2} row_ror:8 row_mask:0xf bank_mask:0x3")
        A(f"v_add_f32_dpp v{a}, v{a+1}, v{a+1} row_ror:8 row_mask:0xf bank_mask:0xc")
        A(f"v_add_f32_dpp v{a+2}, v{a+3}, v{a+3} row_ror:8 row_mask:0xf bank_mask:0xc")
        bq = BR + (pc & 1)
        A(f"v_add_f32_dpp v{bq}, v{a}, v{a} row_shl:4 row_mask:0xf bank_mask:0x5")
        A(f"v_add_f32_dpp v{bq}, v{a+2}, v{a+2} row_shr:4 row_mask:0xf bank_mask:0xa")
        if pc & 1:
            cq = CR + ((pc >> 1) & 1)
            A(f"v_cndmask_b32 v34, v{BR+1}, v{BR}, s[80:81]")
            A(f"v_cndmask_b32 v35, v{BR}, v{BR+1}, s[80:81]")
            A(f"v_add_f32_dpp v{cq}, v34, v35 quad_perm:[2,3,0,1] row_mask:0xf bank_mask:0xf")
        if (pc & 3) == 3:
            A(f"v_cndmask_b32 v34, v{CR+1}, v{CR}, s[82:83]")
            A(f"v_cndmask_b32 v35, v{CR}, v{CR+1}, s[82:83]")
            A(f"v_add_f32_dpp v{SC+6+(pc>>2)}, v34, v35 quad_perm:[1,0,3,2] row_mask:0xf bank_mask:0xf")
    A(f"s_add_u32 s60, s60, {8*16384}")
    A("s_add_u32 s59, s59, 1")
    A("s_cmp_lt_u32 s59, 4")
    A("s_cbranch_scc1 L_kloop")
    stamp(2)
    A(f"s_mov_b32 s56, 0x{SCALE:08x}")
    A(f"s_mov_b32 s57, 0x{LOG2E:08x}")
    for n in range(0, 8, 2):
        A(f"v_cvt_pk_bf16_f32 v{24+n}, v{SC+n}, v{SC+n+1}")
    for n in range(0, 8, 2):
        A(f"v_lshlrev_b32 v{SC+n}, 16, v{24+n}")
        A(f"v_and_b32 v{SC+n+1}, 0xffff0000, v{24+n}")
    for n in range(8):
        A(f"v_mul_f32 v{SC+n}, s56, v{SC+n}")
    for n in range(0, 8, 2):
        A(f"v_cvt_pk_bf16_f32 v{24+n}, v{SC+n}, v{SC+n+1}")
    for n in range(0, 8, 2):
        A(f"v_lshlrev_b32 v{SC+n}, 16, v{24+n}")
        A(f"v_and_b32 v{SC+n+1}, 0xffff0000, v{24+n}")
    A(f"v_max3_f32 v32, v{SC}, v{SC+1}, v{SC+2}")
    A(f"v_max3_f32 v33, v{SC+3}, v{SC+4}, v{SC+5}")
    A(f"v_max3_f32 v32, v32, v{SC+6}, v{SC+7}")
    A("v_max_f32 v32, v32, v33")
    allreduce("v_max_f32", 32, 33)
    for n in range(8):
        A(f"v_sub_f32 v{SC+n}, v{SC+n}, v32")
    for n in range(8):
        A(f"v_mul_f32 v{SC+n}, s57, v{SC+n}")
    for n in range(8):
        A(f"v_exp_f32 v{SC+n}, v{SC+n}")
    for n in range(0, 8, 2):
        A(f"v_add_f32 v{24+n}, v{SC+n}, v{SC+n+1}")
    A("v_add_f32 v24, v24, v26")
    A("v_add_f32 v28, v28, v30")
    A("v_add_f32 v33, v24, v28")
    for n in range(8):
        A(f"v_mov_b32_dpp v{24+n}, v{SC+n} row_ror:8 row_mask:0xf bank_mask:0xf")
    for n in range(8):
        A(f"v_cvt_pk_bf16_f32 v{SC+n}, v{SC+n}, v{24+n}")
    allreduce("v_add_f32", 33, 36, levels=(1, 2, 8, 4, 16, 32))
    A("v_mov_b32 v34, 1")
    A("v_mov_b32 v35, 0")
    A("s_lshl_b32 s56, s3, 4")
    A("v_mov_b32 v36, s56")
    A("s_mov_b64 exec, 1")
    A(f"ds_write_b128 v36, v[32:35] offset:{MLL}")
    A("s_mov_b64 exec, -1")
    A("s_mov_b32 s59, 0")

    def vbody(last):
        for pc in range(8):
            if last:
                A(f"s_waitcnt vmcnt({28-4*pc})")
            elif P > 28:
                A("s_waitcnt vmcnt(28)")
            for pr in range(2):
                t0 = 24 + 8 * pr
                ra = RING + 16 * pc + 8 * pr
                rb = ra + 4
                for q in range(4):
                    A(f"v_perm_b32 v{t0+2*q}, v{rb+q}, v{ra+q}, s35")
                    A(f"v_perm_b32 v{t0+2*q+1}, v{rb+q}, v{ra+q}, s36")
            if not last:
                pace_issue(pc)
            for pr in range(2):
                t0 = 24 + 8 * pr
                lane = bitrev4(4 * (pc & 3) + 2 * pr)
                for n in range(8):
                    A(f"v_dot2c_f32_bf16_dpp v{AO+n}, v{SC+(pc>>2)}, v{t0+n} row_newbcast:{lane} row_mask:0xf bank_mask:0xf")

    A.raw(".p2align 6")
    A.label("L_vloop")
    vbody(False)
    for r in range(6):
        A(f"v_mov_b32 v{SC+r}, v{SC+r+2}")
    A(f"s_add_u32 s60, s60, {8*16384}")
    A("s_add_u32 s59, s59, 1")
    A("s_cmp_lt_u32 s59, 3")
    A("s_cbranch_scc1 L_vloop")
    A("v_lshlrev_b32 v40, 4, v2")
    A("v_lshl_add_u32 v40, v3, 2, v40")
    A("s_lshl_b32 s56, s3, 8")
    A("v_add_u32 v40, s56, v40")
    vbody(True)
    for c in range(4):
        A(f"v_permlane32_swap_b32 v{AO+c}, v{AO+c+4}")
    for c in range(4):
        A(f"v_add_f32 v{AO+c}, v{AO+c}, v{AO+c+4}")
    for c in range(2):
        A(f"v_permlane16_swap_b32 v{AO+c}, v{AO+c+2}")
    for c in range(2):
        A(f"v_add_f32 v{AO+c}, v{AO+c}, v{AO+c+2}")
    A(f"v_cvt_pk_bf16_f32 v24, v{AO}, v{AO+1}")
    A(f"ds_write_b32 v40, v24 offset:{O_LDS}")
    stamp(3)
    A("s_waitcnt lgkmcnt(0)")
    A("s_barrier")
    if stamps:
        A("s_cmp_lg_u32 s3, 0")
        A("s_cbranch_scc1 L_end")
        stamp_out([1, 2, 3])
    A.label("L_end", pad=False)
    A("s_endpgm")
    A.raw("L_code_end:")
    A.raw('.section .rodata,"a"')
    A.raw(".p2align 6")
    A.raw(f".amdhsa_kernel {NAME}_kernel")
    A.raw("  .amdhsa_next_free_vgpr 256")
    A.raw("  .amdhsa_next_free_sgpr 102")
    A.raw("  .amdhsa_accum_offset 256")
    A.raw("  .amdhsa_group_segment_fixed_size 0")
    A.raw("  .amdhsa_kernarg_size 104")
    A.raw("  .amdhsa_user_sgpr_count 2")
    A.raw("  .amdhsa_user_sgpr_kernarg_segment_ptr 1")
    A.raw("  .amdhsa_system_sgpr_workgroup_id_x 1")
    A.raw("  .amdhsa_float_denorm_mode_32 3")
    A.raw("  .amdhsa_float_denorm_mode_16_64 3")
    A.raw(".end_amdhsa_kernel")
    return A


if __name__ == "__main__":
    out = sys.argv[1]
    kw = {}
    for a in sys.argv[2:]:
        for kv in a.split(","):
            k, v = kv.split("=")
            kw[k] = int(v) if v.lstrip("-").isdigit() else ("" if v == "none" else v)
    A = gen(**kw)
    open(out, "w").write(A.text())
    print(out, "instructions:", A.ninstr)
```

```python
import sys
from asmlib import Asm

NAME = "gated_mix__gqa_block_cached__geglu_ffn__decode"

EPOCH = 0
QP = 0x10000
FP = 0x60000
ML = 0xA0000
ZB = 0x100000
YB = 0x200000
WS_BYTES = 0x400000
O_LDS, MLL, ZERO, Q_LDS, T_LDS, LDS_BYTES = 0, 1024, 1280, 1536, 1792, 2048
F2_WG0 = 200
SPIN = 60000

LOG2E = 0x3FB8AA3B
SCALE = 0x3DB504F3


def bitrev4(t):
    return ((t & 1) << 3) | ((t & 2) << 1) | ((t & 4) >> 1) | ((t & 8) >> 3)


def gen(P=16, stamps=0, pol="nt", vpol="nt", wpol="nt", wopol="nt", sleep=1, prefetch=1, hprio=1):
    A = Asm()
    hdr = open("cdna_kernels/%s.s.ref" % NAME).read().split("; Override")[0]
    A.raw(hdr.rstrip())
    A.raw(f"; @launch grid=(256,1,1) block=(512,1,1) lds={LDS_BYTES}")
    A.raw('.amdgcn_target "amdgcn-amd-amdhsa--gfx950"')
    A.raw(".text")
    A.raw(f".globl {NAME}_kernel")
    A.raw(".p2align 8")
    A.raw(f".type {NAME}_kernel,@function")
    A.raw(f"{NAME}_kernel:")

    def stamp(k):
        if stamps:
            A(f"s_memrealtime s[{84+2*k}:{85+2*k}]")

    def stamp_out(slots):
        if not stamps:
            return
        A("s_waitcnt lgkmcnt(0)")
        A("s_lshl_b32 s56, s2, 6")
        A("s_add_u32 s56, s56, 0x10000000")
        A("s_add_u32 s52, s28, s56")
        A("s_addc_u32 s53, s29, 0")
        A("s_mov_b32 s54, 64")
        A("s_mov_b32 s55, 0x20000")
        A("v_mov_b32 v2, 0")
        A("s_mov_b64 exec, 1")
        for k in slots:
            A(f"v_mov_b32 v16, s{84+2*k}")
            A(f"v_mov_b32 v17, s{85+2*k}")
            A(f"buffer_store_dwordx2 v[16:17], v2, s[52:55], 0 offen offset:{8*k}")
            A("s_nop 1")
        A("s_mov_b64 exec, -1")

    A("s_cmp_ge_u32 s2, 256")
    A("s_cbranch_scc1 L_end")
    A("s_load_dwordx16 s[4:19], s[0:1], 0")
    A("s_load_dwordx8 s[20:27], s[0:1], 64")
    A("s_load_dwordx2 s[28:29], s[0:1], 96")
    stamp(0)
    A("v_lshrrev_b32 v1, 6, v0")
    A("v_and_b32 v2, 15, v0")
    A("v_readfirstlane_b32 s3, v1")
    A("v_and_b32 v1, 63, v0")
    A("v_lshrrev_b32 v3, 4, v1")
    A("s_and_b32 s34, s2, 7")
    A("s_lshr_b32 s56, s2, 6")
    A("s_lshl_b32 s56, s56, 3")
    A("s_add_u32 s30, s34, s56")
    A("s_lshr_b32 s56, s2, 3")
    A("s_and_b32 s32, s56, 3")
    A("s_lshr_b32 s31, s56, 2")
    A("s_and_b32 s31, s31, 1")
    A("s_lshl_b32 s33, s31, 5")
    A("s_add_u32 s33, s33, s30")
    A("s_mov_b32 s35, 0x05040100")
    A("s_mov_b32 s36, 0x07060302")
    A("s_movk_i32 s37, 0xff")
    A("s_mov_b32 s43, 0x20000")
    A("s_mov_b32 s47, 0x20000")
    A("s_mov_b32 s51, 0x20000")
    A(f"s_mov_b32 s46, {WS_BYTES}")
    A("s_cmp_ge_u32 s3, 4")
    A("s_cbranch_scc1 L_stream")

    if hprio:
        A(f"s_setprio {hprio}")
    A("s_lshr_b32 s63, s2, 3")
    A("s_lshr_b32 s64, s2, 2")
    A("s_and_b32 s64, s64, 1")
    A("s_and_b32 s65, s2, 3")
    A("s_movk_i32 s56, 3456")
    A("s_lshl_b32 s57, s63, 7")
    A("s_movk_i32 s59, 128")
    A("s_movk_i32 s60, 4096")
    A("s_movk_i32 s61, 256")
    A("s_lshl_b32 s62, s63, 13")
    A("s_lshl_b32 s66, s64, 2")
    A("s_add_u32 s66, s66, s65")
    A("s_lshl_b32 s66, s66, 4")
    A("s_add_u32 s62, s62, s66")
    A(f"s_add_u32 s62, s62, {FP}")
    A(f"s_mov_b32 s42, {640*3456}")
    A("s_cmp_lg_u32 s3, 0")
    A("s_cbranch_scc1 L_h_notq")
    A("s_movk_i32 s56, 8192")
    A("s_lshl_b32 s57, s30, 8")
    A("s_lshl_b32 s66, s31, 7")
    A("s_add_u32 s57, s57, s66")
    A(f"s_mov_b32 s59, {32*4096}")
    A("s_movk_i32 s60, 64")
    A("s_movk_i32 s61, 16")
    A("s_lshl_b32 s62, s30, 12")
    A("s_add_u32 s62, s62, s66")
    A("s_lshl_b32 s66, s32, 8")
    A("s_add_u32 s62, s62, s66")
    A(f"s_add_u32 s62, s62, {QP}")
    A(f"s_mov_b32 s42, {640*8192}")
    A("s_mov_b32 s65, s32")
    A.label("L_h_notq", pad=False)
    A("s_mul_i32 s66, s65, 160")
    A("s_mul_i32 s66, s66, s56")
    A("s_add_u32 s57, s57, s66")
    A("s_mul_i32 s58, s65, 320")
    A("s_mul_i32 s67, s56, 25")
    A("v_lshlrev_b32 v5, 3, v3")
    A("v_mul_lo_u32 v5, v5, s56")
    A("v_lshl_add_u32 v5, v2, 3, v5")
    A("v_lshrrev_b32 v6, 3, v2")
    A("v_mul_u32_u24 v6, 1280, v6")
    A("v_lshl_add_u32 v6, v3, 4, v6")
    A("v_mov_b32 v7, 0")
    A("s_waitcnt lgkmcnt(0)")
    A("s_mov_b32 s44, s28")
    A("s_mov_b32 s45, s29")
    A("s_mov_b32 s48, s4")
    A("s_mov_b32 s49, s5")
    A("s_movk_i32 s50, 2560")
    A("s_cmp_eq_u32 s64, 0")
    A("s_cselect_b32 s40, s16, s18")
    A("s_cselect_b32 s41, s17, s19")
    A("s_cmp_eq_u32 s3, 0")
    A("s_cselect_b32 s40, s10, s40")
    A("s_cselect_b32 s41, s11, s41")
    A("s_cmp_ge_u32 s3, 2")
    A("s_cbranch_scc1 L_h_idle0")
    A("s_cmp_eq_u32 s3, 0")
    A("s_cselect_b32 s66, 0, s2")
    A("s_cmp_ge_u32 s66, 216")
    A("s_cbranch_scc1 L_h_idle0")
    W0, X0, FR0, AC0 = 16, 96, 116, 132
    A(f"buffer_load_dword v4, v7, s[44:47], 0 offen offset:{EPOCH} sc1")
    for ks in range(5):
        A(f"buffer_load_dwordx4 v[{X0+4*ks}:{X0+4*ks+3}], v6, s[48:51], s58 offen offset:{64*ks}")
    for ks in range(5):
        for e in range(8):
            r = W0 + 2 * (8 * ks + e)
            A(f"buffer_load_dwordx2 v[{r}:{r+1}], v5, s[40:43], s57 offen {wpol}")
            A(f"s_add_u32 s57, s57, {'s56' if e < 7 else 's67'}")
    A("s_barrier")
    A("v_lshrrev_b32 v8, 1, v3")
    A("v_mul_lo_u32 v8, v8, s59")
    A("v_lshrrev_b32 v9, 3, v2")
    A("v_mul_lo_u32 v9, v9, s60")
    A("v_add_u32 v8, v8, v9")
    A("v_bfe_u32 v9, v2, 1, 2")
    A("v_mul_lo_u32 v9, v9, s61")
    A("v_add_u32 v8, v8, v9")
    A("v_and_b32 v9, 1, v2")
    A("v_lshlrev_b32 v9, 1, v9")
    A("v_and_b32 v10, 1, v3")
    A("v_add_u32 v9, v9, v10")
    A("v_lshl_add_u32 v8, v9, 10, v8")
    A("v_cmp_eq_u32 s[68:69], 1, v10")
    for ks in range(5):
        A(f"s_waitcnt vmcnt({40-8*(ks+1)})")
        for c in range(4):
            for d in range(4):
                lo = W0 + 2 * (8 * ks + 2 * d) + (c >> 1)
                hi = W0 + 2 * (8 * ks + 2 * d + 1) + (c >> 1)
                A(f"v_perm_b32 v{FR0+4*c+d}, v{hi}, v{lo}, {'s36' if c & 1 else 's35'}")
        for c in range(4):
            cc = "0" if ks == 0 else f"v[{AC0+4*c}:{AC0+4*c+3}]"
            A(f"v_mfma_f32_16x16x32_bf16 v[{AC0+4*c}:{AC0+4*c+3}], v[{X0+4*ks}:{X0+4*ks+3}], v[{FR0+4*c}:{FR0+4*c+3}], {cc}")
    A("v_add_u32 v4, 1, v4")
    A("v_mov_b32 v13, v4")
    A("v_mov_b32 v15, v4")
    A(f"v_cndmask_b32 v12, v{AC0}, v{AC0+8}, s[68:69]")
    A(f"v_cndmask_b32 v14, v{AC0+4}, v{AC0+12}, s[68:69]")
    A("v_bfi_b32 v12, s37, v4, v12")
    A("v_bfi_b32 v14, s37, v4, v14")
    A("buffer_store_dwordx4 v[12:15], v8, s[44:47], s62 offen sc1")
    A("s_cmp_lg_u32 s3, 0")
    A("s_cbranch_scc1 L_h_bar1")
    A("v_lshlrev_b32 v9, 4, v1")
    A("s_lshl_b32 s56, s33, 12")
    A(f"s_add_u32 s56, s56, {QP}")
    A(f"s_mov_b32 s57, {SPIN}")
    QL = 148

    def check(regs, bad, tmp):
        for n, r in enumerate(regs):
            A(f"v_bitop3_b32 v{tmp}, v{r}, v{r+2}, v4 bitop3:0x7e")
            A(f"v_bitop3_b32 v{tmp+1}, v{r+1}, v{r+3}, v4 bitop3:0x7e")
            if n == 0:
                A(f"v_and_or_b32 v{bad}, v{tmp}, s37, v{tmp+1}")
            else:
                A(f"v_and_or_b32 v{tmp}, v{tmp}, s37, v{tmp+1}")
                A(f"v_or_b32 v{bad}, v{bad}, v{tmp}")

    def poll(lbl, regs, voff, soff, imm, bad, tmp, cnt, width=4, lanes=None):
        A.label(lbl)
        for n, r in enumerate(regs):
            A(f"buffer_load_dwordx4 v[{r}:{r+3}], {voff}, s[44:47], {soff} offen offset:{imm[n]} sc1")
        A("s_waitcnt vmcnt(0)")
        check(regs, bad, tmp)
        if lanes is not None:
            A(f"v_cndmask_b32 v{bad}, 0, v{bad}, {lanes}")
        A(f"v_cmp_ne_u32 vcc, 0, v{bad}")
        A(f"s_cbranch_vccz {lbl}_ok")
        A(f"s_sleep {sleep}")
        A(f"s_sub_u32 {cnt}, {cnt}, 1")
        A(f"s_cbranch_scc0 {lbl}")
        A.label(lbl + "_ok", pad=False)

    poll("L_pq", [QL + 4 * i for i in range(4)], "v9", "s56", [1024 * i for i in range(4)], 10, 164, "s57")
    for n in range(8):
        A(f"v_and_b32 v{QL+2*n}, 0xffffff00, v{QL+2*n}")
    for n in range(4):
        A(f"v_permlane32_swap_b32 v{QL+2*n}, v{QL+2*(n+4)}")
    for n in range(4):
        A(f"v_add_f32 v{QL+2*n}, v{QL+2*n}, v{QL+2*(n+4)}")
    for n in range(2):
        A(f"v_permlane16_swap_b32 v{QL+2*n}, v{QL+2*(n+2)}")
    for n in range(2):
        A(f"v_add_f32 v{QL+2*n}, v{QL+2*n}, v{QL+2*(n+2)}")
    A(f"v_cvt_pk_bf16_f32 v10, v{QL}, v{QL+2}")
    A("v_lshlrev_b32 v9, 4, v2")
    A("v_lshl_add_u32 v9, v3, 2, v9")
    A(f"ds_write_b32 v9, v10 offset:{Q_LDS}")
    A(f"ds_write_b32 v7, v4 offset:{T_LDS}")
    A("s_waitcnt lgkmcnt(0)")
    A("s_branch L_h_bar1")

    A.label("L_h_idle0")
    A("s_cmp_lg_u32 s3, 3")
    A("s_cbranch_scc1 L_h_noinit")
    A("v_lshlrev_b32 v9, 3, v1")
    A("v_mov_b32 v10, 0")
    A("v_mov_b32 v11, 0")
    A(f"ds_write_b64 v9, v[10:11] offset:{MLL}")
    A("s_waitcnt lgkmcnt(0)")
    A.label("L_h_noinit", pad=False)
    A("s_barrier")
    if prefetch:
        A("s_cmp_lg_u32 s3, 2")
        A("s_cbranch_scc1 L_h_bar1")
        A("s_getpc_b64 s[48:49]")
        A.raw("L_pc:")
        A(f"s_sub_u32 s48, s48, L_pc-{NAME}_kernel")
        A("s_subb_u32 s49, s49, 0")
        A(f"s_mov_b32 s50, L_code_end-{NAME}_kernel")
        A("v_lshlrev_b32 v9, 7, v1")
        for i in range(4):
            A(f"s_mov_b32 s56, {8192*i}")
            A(f"buffer_load_dword v{16+i}, v9, s[48:51], s56 offen")
    A.label("L_h_bar1")
    A("s_barrier")
    A(f"ds_read_b32 v4, v7 offset:{T_LDS}")
    F0, G0 = 16, 176
    A(f"s_mul_i32 s56, s30, {128*1280}")
    A("s_add_u32 s40, s12, s56")
    A("s_addc_u32 s41, s13, 0")
    A(f"s_mov_b32 s42, {128*1280}")
    A("v_mul_u32_u24 v5, 10240, v3")
    A("s_lshl_b32 s56, s3, 6")
    A("s_add_u32 s56, s56, 1024")
    A("v_lshl_add_u32 v6, v2, 2, v5")
    A("v_add_u32 v6, s56, v6")
    A("s_lshl_b32 s56, s3, 8")
    A("v_lshl_add_u32 v5, v2, 4, v5")
    A("v_add_u32 v5, s56, v5")
    A("s_waitcnt vmcnt(0)")

    def wload(ks, st):
        for half in range(2):
            A(f"s_mov_b32 s56, {ks*40960 + half*5120}")
            for e4 in range(4):
                e = half * 4 + e4
                A(f"buffer_load_dwordx4 v[{st+4*e}:{st+4*e+3}], v5, s[40:43], s56 offen offset:{e4*1280} {wopol}")
                A(f"buffer_load_dword v{st+32+e}, v6, s[40:43], s56 offen offset:{e4*1280} {wopol}")

    def wperm(st, dst):
        for c in range(8):
            for d in range(4):
                A(f"v_perm_b32 v{dst+4*c+d}, v{st+4*(2*d+1)+(c>>1)}, v{st+4*(2*d)+(c>>1)}, {'s36' if c & 1 else 's35'}")
        for cc in range(2):
            for d in range(4):
                A(f"v_perm_b32 v{dst+32+4*cc+d}, v{st+32+2*d+1}, v{st+32+2*d}, {'s36' if cc else 's35'}")

    wload(0, G0)
    wload(1, G0 + 40)
    A("s_waitcnt vmcnt(16)")
    wperm(G0, F0)
    wload(2, G0)
    A("s_waitcnt vmcnt(16)")
    wperm(G0 + 40, F0 + 40)
    wload(3, G0 + 40)
    A("s_waitcnt vmcnt(16)")
    wperm(G0, F0 + 80)
    A(f"s_sub_u32 s70, s2, {F2_WG0}")
    A("s_cmp_ge_u32 s70, 54")
    A("s_cbranch_scc1 L_h_nof2a")
    A("s_waitcnt vmcnt(0)")
    wperm(G0 + 40, F0 + 120)
    A("s_mul_i32 s56, s70, 40960")
    A("s_add_u32 s40, s20, s56")
    A("s_addc_u32 s41, s21, 0")
    A("s_mov_b32 s42, 40960")
    wload(0, G0)
    A("s_waitcnt vmcnt(0) lgkmcnt(0)")
    wperm(G0, G0 + 40)
    A("v_lshlrev_b32 v9, 4, v1")
    A("s_lshl_b32 s56, s70, 12")
    A(f"s_add_u32 s56, s56, {FP}")
    A(f"s_mov_b32 s57, {SPIN}")
    GL = G0
    poll("L_pf", [GL + 4 * i for i in range(4)], "v9", "s56", [1024 * i for i in range(4)], 10, 192, "s57")
    val = [GL + 2 * n for n in range(8)]
    tmp = [GL + 2 * n + 1 for n in range(8)]
    for r in val:
        A(f"v_and_b32 v{r}, 0xffffff00, v{r}")
    for r in val:
        A(f"v_add_f32_dpp v{r}, v{r}, v{r} quad_perm:[1,0,3,2] row_mask:0xf bank_mask:0xf")
    for r in val:
        A(f"v_add_f32_dpp v{r}, v{r}, v{r} quad_perm:[2,3,0,1] row_mask:0xf bank_mask:0xf")
    for n in range(0, 8, 2):
        A(f"v_cvt_pk_bf16_f32 v{tmp[n]}, v{val[n]}, v{val[n+1]}")
    for n in range(0, 8, 2):
        A(f"v_lshlrev_b32 v{val[n]}, 16, v{tmp[n]}")
        A(f"v_and_b32 v{val[n+1]}, 0xffff0000, v{tmp[n]}")
    T2 = [192 + n for n in range(8)]
    U = [200 + n for n in range(8)]
    A("s_mov_b32 s56, 0x3d372713")
    A("s_mov_b32 s57, 0xc0135761")
    for n in range(8):
        A(f"v_mov_b32_dpp v{U[n]}, v{val[n]} row_shl:4 row_mask:0xf bank_mask:0xf bound_ctrl:0")
    for n in range(8):
        A(f"v_mul_f32 v{tmp[n]}, v{val[n]}, v{val[n]}")
    for n in range(8):
        A(f"v_mul_f32 v{tmp[n]}, v{tmp[n]}, v{val[n]}")
    for n in range(8):
        A(f"v_fma_f32 v{tmp[n]}, v{tmp[n]}, s56, v{val[n]}")
    for n in range(8):
        A(f"v_mul_f32 v{tmp[n]}, s57, v{tmp[n]}")
    for n in range(8):
        A(f"v_exp_f32 v{tmp[n]}, v{tmp[n]}")
    for n in range(8):
        A(f"v_add_f32 v{tmp[n]}, 1.0, v{tmp[n]}")
    for n in range(8):
        A(f"v_rcp_f32 v{tmp[n]}, v{tmp[n]}")
    for n in range(8):
        A(f"v_mul_f32 v{val[n]}, v{val[n]}, v{tmp[n]}")
    for n in range(0, 8, 2):
        A(f"v_cvt_pk_bf16_f32 v{tmp[n]}, v{val[n]}, v{val[n+1]}")
    for n in range(0, 8, 2):
        A(f"v_lshlrev_b32 v{val[n]}, 16, v{tmp[n]}")
        A(f"v_and_b32 v{val[n+1]}, 0xffff0000, v{tmp[n]}")
    for n in range(8):
        A(f"v_mul_f32 v{val[n]}, v{val[n]}, v{U[n]}")
    for n in range(0, 8, 2):
        A(f"v_cvt_pk_bf16_f32 v{12+n//2}, v{val[n]}, v{val[n+1]}")
    for d in range(4):
        A(f"v_mov_b32_dpp v{12+d}, v{12+d} row_shr:4 row_mask:0xf bank_mask:0xa")
    for c in range(10):
        A(f"v_mfma_f32_16x16x32_bf16 v[{G0+4*c}:{G0+4*c+3}], v[12:15], v[{G0+40+4*c}:{G0+40+4*c+3}], 0")
    A("v_lshrrev_b32 v8, 1, v3")
    A("v_mul_u32_u24 v8, 80, v8")
    A("v_and_b32 v10, 1, v3")
    A("v_cmp_eq_u32 s[68:69], 1, v10")
    A("s_lshl_b32 s56, s3, 4")
    A("v_add3_u32 v9, v8, v2, s56")
    A("v_lshlrev_b32 v9, 12, v9")
    A("v_lshl_add_u32 v9, v10, 5, v9")
    A("s_lshl_b32 s56, s3, 2")
    A("s_add_u32 s56, s56, 64")
    A("v_lshrrev_b32 v11, 2, v2")
    A("v_add3_u32 v8, v8, v11, s56")
    A("v_lshlrev_b32 v8, 12, v8")
    A("v_and_b32 v11, 3, v2")
    A("v_lshl_add_u32 v8, v11, 4, v8")
    A("s_lshl_b32 s56, s70, 6")
    A(f"s_add_u32 s56, s56, {ZB}")
    PKZ = G0 + 40
    for q in range(3):
        A(f"v_mov_b32 v{PKZ+4*q+1}, v4")
        A(f"v_mov_b32 v{PKZ+4*q+3}, v4")
    for c in range(4):
        A(f"v_cndmask_b32 v{PKZ+2*c}, v{G0+4*c}, v{G0+4*(c+4)}, s[68:69]")
    for c in range(4):
        A(f"v_bfi_b32 v{PKZ+2*c}, s37, v4, v{PKZ+2*c}")
    A(f"v_bfi_b32 v{PKZ+8}, s37, v4, v{G0+32}")
    A(f"v_bfi_b32 v{PKZ+10}, s37, v4, v{G0+36}")
    A(f"buffer_store_dwordx4 v[{PKZ}:{PKZ+3}], v9, s[44:47], s56 offen sc1")
    A(f"buffer_store_dwordx4 v[{PKZ+4}:{PKZ+7}], v9, s[44:47], s56 offen offset:16 sc1")
    A(f"buffer_store_dwordx4 v[{PKZ+8}:{PKZ+11}], v8, s[44:47], s56 offen sc1")
    A("s_branch L_h_nof2b")
    A.label("L_h_nof2a")
    A("s_waitcnt vmcnt(0) lgkmcnt(0)")
    wperm(G0 + 40, F0 + 120)
    A.label("L_h_nof2b")
    stamp(6)
    A("s_cmp_eq_u32 s3, 3")
    A("s_cselect_b32 s71, s2, 255")
    A("s_cmp_ge_u32 s71, 160")
    A("s_cbranch_scc1 L_h_nored")
    A("s_cmp_ge_u32 s2, 80")
    A("s_cselect_b32 s56, 1280, 0")
    A("s_mov_b32 s48, s4")
    A("s_mov_b32 s49, s5")
    A("s_movk_i32 s50, 2560")
    A("s_mov_b32 s52, s22")
    A("s_mov_b32 s53, s23")
    A("s_movk_i32 s54, 1280")
    A("s_mov_b32 s55, 0x20000")
    A("v_lshlrev_b32 v9, 2, v1")
    for t in range(5):
        A(f"buffer_load_dword v{192+t}, v9, s[48:51], s56 offen offset:{256*t}")
        A(f"buffer_load_dword v{197+t}, v9, s[52:55], 0 offen offset:{256*t}")
    A("v_mov_b32 v5, 0")
    A("s_waitcnt vmcnt(0)")
    for t in range(5):
        A(f"v_lshlrev_b32 v202, 16, v{192+t}")
        A(f"v_lshlrev_b32 v203, 16, v{197+t}")
        A(f"v_and_b32 v204, 0xffff0000, v{192+t}")
        A(f"v_and_b32 v205, 0xffff0000, v{197+t}")
        A("v_mul_f32 v202, v202, v203")
        A("v_mul_f32 v204, v204, v205")
        A("v_cvt_pk_bf16_f32 v202, v202, v204")
        A("v_lshlrev_b32 v203, 16, v202")
        A("v_and_b32 v204, 0xffff0000, v202")
        A("v_add_f32 v5, v5, v203")
        A("v_add_f32 v5, v5, v204")

    def allreduce(op, r, t, levels=(1, 2, 4, 8, 16, 32)):
        for lv in levels:
            if lv == 1:
                A(f"{op}_dpp v{r}, v{r}, v{r} quad_perm:[1,0,3,2] row_mask:0xf bank_mask:0xf")
            elif lv == 2:
                A(f"{op}_dpp v{r}, v{r}, v{r} quad_perm:[2,3,0,1] row_mask:0xf bank_mask:0xf")
            elif lv == 4:
                A(f"{op}_dpp v{r}, v{r}, v{r} row_ror:4 row_mask:0xf bank_mask:0xf")
            elif lv == 8:
                A(f"{op}_dpp v{r}, v{r}, v{r} row_ror:8 row_mask:0xf bank_mask:0xf")
            else:
                A(f"v_mov_b32 v{t}, v{r}")
                A(f"v_permlane{lv}_swap_b32 v{r}, v{t}")
                A(f"{op} v{r}, v{r}, v{t}")

    allreduce("v_add_f32", 5, 202, levels=(1, 2, 8, 4, 16, 32))
    A("v_cvt_pk_bf16_f32 v5, v5, v5")
    A("v_and_b32 v5, 0xffff0000, v5")
    A(f"v_mul_f32 v5, 0x{LOG2E ^ 0x80000000:08x}, v5")
    A("v_exp_f32 v5, v5")
    A("v_add_f32 v5, 1.0, v5")
    A("v_rcp_f32 v5, v5")
    A("v_cvt_pk_bf16_f32 v5, v5, v5")
    A("v_and_b32 v5, 0xffff0000, v5")
    A("v_sub_f32 v202, 1.0, v5")
    A("v_cvt_pk_bf16_f32 v202, v202, v202")
    A("v_and_b32 v202, 0xffff0000, v202")
    A("v_lshlrev_b32 v9, 4, v1")
    A("s_lshl_b32 s56, s2, 12")
    A(f"s_add_u32 s56, s56, {ZB}")
    A(f"s_mov_b32 s57, {SPIN}")
    A("v_cmp_gt_u32 s[68:69], 24, v1")
    A.label("L_pz")
    for n in range(4):
        A(f"buffer_load_dwordx4 v[{G0+4*n}:{G0+4*n+3}], v9, s[44:47], s56 offen offset:{1024*n} sc1")
    A("s_waitcnt vmcnt(0)")
    check([G0 + 12], 11, 204)
    A("v_cndmask_b32 v11, 0, v11, s[68:69]")
    check([G0, G0 + 4, G0 + 8], 10, 204)
    A("v_or_b32 v10, v10, v11")
    A("v_cmp_ne_u32 vcc, 0, v10")
    A("s_cbranch_vccz L_pz_ok")
    A("s_sleep 8")
    A("s_sub_u32 s57, s57, 1")
    A("s_cbranch_scc0 L_pz")
    A.label("L_pz_ok", pad=False)
    for n in range(8):
        A(f"v_and_b32 v{G0+2*n}, 0xffffff00, v{G0+2*n}")
    A(f"v_cndmask_b32 v{G0+12}, 0, v{G0+12}, s[68:69]")
    A(f"v_cndmask_b32 v{G0+14}, 0, v{G0+14}, s[68:69]")
    for k in range(2):
        A(f"v_add_f32 v{6+k}, v{G0+2*k}, v{G0+4+2*k}")
        A(f"v_add_f32 v{204+k}, v{G0+8+2*k}, v{G0+12+2*k}")
    for k in range(2):
        A(f"v_add_f32 v{6+k}, v{6+k}, v{204+k}")
    for k in range(2):
        allreduce("v_add_f32", 6 + k, 204 + k, levels=(8, 4, 16, 32))
    A("v_cvt_pk_bf16_f32 v204, v6, v7")
    A("v_lshlrev_b32 v6, 16, v204")
    A("v_and_b32 v7, 0xffff0000, v204")
    A("v_mul_f32 v6, v6, v202")
    A("v_mul_f32 v7, v7, v202")
    A("v_cvt_pk_bf16_f32 v204, v6, v7")
    A("v_lshlrev_b32 v6, 16, v204")
    A("v_and_b32 v7, 0xffff0000, v204")
    A.label("L_h_nored")
    A("v_and_b32 v8, 3, v1")
    A("v_lshlrev_b32 v8, 4, v8")
    A(f"s_mov_b32 s57, {SPIN*16}")
    A.label("L_pl")
    A(f"ds_read_b128 v[232:235], v8 offset:{MLL}")
    A("s_waitcnt lgkmcnt(0)")
    A("v_cmp_ne_u32 vcc, 1, v234")
    A("s_cbranch_vccz L_pl_ok")
    A("s_sleep 4")
    A("s_sub_u32 s57, s57, 1")
    A("s_cbranch_scc0 L_pl")
    A.label("L_pl_ok", pad=False)
    A(f"s_mov_b32 s58, 0x{LOG2E:08x}")

    def stats(mr, lr, M, Lr, t):
        A(f"v_mov_b32 v{M}, v{mr}")
        allreduce("v_max_f32", M, t, levels=(1, 2))
        A(f"v_sub_f32 v{t}, v{mr}, v{M}")
        A(f"v_mul_f32 v{t}, s58, v{t}")
        A(f"v_exp_f32 v{t}, v{t}")
        A(f"v_mul_f32 v{Lr}, v{lr}, v{t}")
        allreduce("v_add_f32", Lr, t, levels=(1, 2))

    stats(232, 233, 236, 238, 240)
    A("v_add_u32 v238, 0x80, v238")
    A("v_bfi_b32 v236, s37, v4, v236")
    A("v_bfi_b32 v238, s37, v4, v238")
    A("v_mov_b32 v237, v4")
    A("v_mov_b32 v239, v4")
    A("s_lshl_b32 s56, s33, 6")
    A(f"s_add_u32 s56, s56, {ML}")
    A("s_cmp_lg_u32 s3, 0")
    A("s_cbranch_scc1 L_h_nopub")
    A("s_lshl_b32 s59, s32, 4")
    A("v_mov_b32 v9, s59")
    A("s_mov_b64 exec, 1")
    A("buffer_store_dwordx4 v[236:239], v9, s[44:47], s56 offen sc1")
    A("s_mov_b64 exec, -1")
    A.label("L_h_nopub")
    A(f"s_mov_b32 s57, {SPIN}")
    old_sleep = sleep
    poll("L_pm", [240], "v8", "s56", [0], 10, 244, "s57")
    A("v_and_b32 v240, 0xffffff00, v240")
    A("v_and_b32 v242, 0xffffff00, v242")
    stats(240, 242, 241, 243, 244)
    A("v_rcp_f32 v243, v243")
    A("v_sub_f32 v244, v232, v241")
    A("v_mul_f32 v244, s58, v244")
    A("v_exp_f32 v244, v244")
    A("v_mul_f32 v244, v244, v243")
    for r in range(4):
        A(f"v_readlane_b32 s{60+r}, v244, {r}")
    A("v_and_b32 v8, 3, v2")
    A("v_lshlrev_b32 v8, 8, v8")
    A("v_lshl_add_u32 v8, v3, 4, v8")
    A("v_lshlrev_b32 v9, 4, v3")
    A(f"v_add_u32 v9, {ZERO}, v9")
    A("v_lshrrev_b32 v10, 2, v2")
    for gp in range(4):
        A(f"v_cmp_eq_u32 vcc, {gp}, v10")
        A(f"v_cndmask_b32 v{224+gp}, v9, v8, vcc")
    A("s_mul_i32 s56, s31, 80")
    A("s_lshl_b32 s57, s3, 4")
    A("s_add_u32 s57, s57, s56")
    A("v_add_u32 v228, s57, v2")
    A("v_lshlrev_b32 v228, 13, v228")
    A("v_lshl_add_u32 v228, v3, 4, v228")
    A("s_lshl_b32 s57, s3, 2")
    A("s_add_u32 s57, s57, s56")
    A("s_add_u32 s57, s57, 64")
    A("v_add_u32 v229, s57, v10")
    A("v_lshlrev_b32 v229, 13, v229")
    A("v_and_b32 v11, 3, v2")
    A("v_lshl_add_u32 v229, v11, 4, v229")
    A("s_lshl_b32 s56, s34, 4")
    A("s_lshr_b32 s57, s30, 3")
    A("s_lshl_b32 s57, s57, 2")
    A("s_add_u32 s56, s56, s57")
    A("s_add_u32 s56, s56, s32")
    A("s_lshl_b32 s56, s56, 6")
    A(f"s_add_u32 s72, s56, {YB}")
    for r in (9, 11, 13, 15):
        A(f"v_mov_b32 v{r}, v4")
    A("v_lshlrev_b32 v230, 4, v1")
    A("s_lshl_b32 s73, s2, 13")
    A(f"s_add_u32 s73, s73, {YB}")
    A("s_add_u32 s74, s73, 4096")
    A("s_mov_b32 s52, s24")
    A("s_mov_b32 s53, s25")
    A("s_movk_i32 s54, 2560")
    A("s_mov_b32 s55, 0x20000")
    A("s_lshl_b32 s75, s2, 4")
    A("v_lshlrev_b32 v231, 2, v1")
    stamp(4)
    A("s_barrier")
    AB, ACC = G0, G0 + 32

    def aread(ks):
        for gp in range(4):
            r = AB + (ks & 1) * 16 + 4 * gp
            A(f"ds_read_b128 v[{r}:{r+3}], v{224+gp} offset:{O_LDS + 64*ks}")

    aread(0)
    aread(1)
    for ks in range(4):
        A(f"s_waitcnt lgkmcnt({4 if ks < 3 else 0})")
        a = AB + (ks & 1) * 16
        order = [0, 1, 8, 9, 2, 3, 4, 5, 6, 7]
        for c in order:
            acc = ACC + 4 * (c & 1) + (8 if c >= 8 else 0)
            av = a + 4 * (c >> 1) if c < 8 else a
            first = ks == 0 and c in (0, 1, 8, 9)
            cc = "0" if first else f"v[{acc}:{acc+3}]"
            f = F0 + 40 * ks + 4 * c
            A(f"v_mfma_f32_16x16x32_bf16 v[{acc}:{acc+3}], v[{av}:{av+3}], v[{f}:{f+3}], {cc}")
        if ks < 2:
            aread(ks + 2)
    outs = [12, 14, 8, 10]
    accs = [ACC + 8, ACC + 12, ACC, ACC + 4]
    for o, ac in zip(outs, accs):
        A(f"v_mul_f32 v{o}, s60, v{ac}")
    for r in range(1, 4):
        for o, ac in zip(outs, accs):
            A(f"v_fma_f32 v{o}, v{ac+r}, s{60+r}, v{o}")
    for o in outs:
        A(f"v_bfi_b32 v{o}, s37, v4, v{o}")
    A("buffer_store_dwordx4 v[8:11], v228, s[44:47], s72 offen sc1")
    A("s_mov_b64 exec, 0xffff")
    A("buffer_store_dwordx4 v[12:15], v229, s[44:47], s72 offen sc1")
    A("s_mov_b64 exec, -1")
    stamp(5)
    A("s_cmp_ge_u32 s71, 160")
    A("s_cbranch_scc1 L_h_done")
    A("s_mov_b32 s76, 0")
    A(f"s_mov_b32 s57, {SPIN}")
    YL = F0
    A.label("L_py")
    for i in range(8):
        A(f"s_bitcmp1_b32 s76, {i}")
        A(f"s_cbranch_scc1 L_py_l{i}")
        A(f"buffer_load_dwordx4 v[{YL+4*i}:{YL+4*i+3}], v230, s[44:47], {'s73' if i < 4 else 's74'} offen offset:{1024*(i&3)} sc1")
        A.label(f"L_py_l{i}", pad=False)
    A("s_waitcnt vmcnt(0)")
    for i in range(8):
        A(f"s_bitcmp1_b32 s76, {i}")
        A(f"s_cbranch_scc1 L_py_c{i}")
        check([YL + 4 * i], 10, 48)
        A("v_cmp_ne_u32 vcc, 0, v10")
        A(f"s_cbranch_vccnz L_py_c{i}")
        A(f"s_bitset1_b32 s76, {i}")
        A(f"v_and_b32 v{YL+4*i}, 0xffffff00, v{YL+4*i}")
        A(f"v_and_b32 v{YL+4*i+2}, 0xffffff00, v{YL+4*i+2}")
        A.label(f"L_py_c{i}", pad=False)
    A("s_cmp_eq_u32 s76, 0xff")
    A("s_cbranch_scc1 L_py_ok")
    if sleep:
        A(f"s_sleep {sleep}")
    A("s_sub_u32 s57, s57, 1")
    A("s_cbranch_scc0 L_py")
    A.label("L_py_ok", pad=False)
    for step in (1, 2, 4):
        for i in range(0, 8, 2 * step):
            for k in (0, 2):
                A(f"v_add_f32 v{YL+4*i+k}, v{YL+4*i+k}, v{YL+4*(i+step)+k}")
    r0, r1 = YL, YL + 2
    for ctrl in ("row_ror:8", "row_ror:4"):
        for r in (r0, r1):
            A(f"v_add_f32_dpp v{r}, v{r}, v{r} {ctrl} row_mask:0xf bank_mask:0xf")
    A(f"v_permlane32_swap_b32 v{r0}, v{r1}")
    A(f"v_add_f32 v{r0}, v{r0}, v{r1}")
    A(f"v_mov_b32 v{r1}, v{r0}")
    A(f"v_permlane16_swap_b32 v{r0}, v{r1}")
    A(f"v_add_f32 v{r0}, v{r0}, v{r1}")
    A(f"v_mov_b32 v{r1}, v{r0}")
    A(f"v_permlane32_swap_b32 v{r0}, v{r1}")
    A(f"v_cvt_pk_bf16_f32 v10, v{r0}, v{r1}")
    A("v_lshlrev_b32 v8, 16, v10")
    A("v_and_b32 v9, 0xffff0000, v10")
    A("v_mul_f32 v8, v8, v5")
    A("v_mul_f32 v9, v9, v5")
    A("v_cvt_pk_bf16_f32 v10, v8, v9")
    A("v_lshlrev_b32 v8, 16, v10")
    A("v_and_b32 v9, 0xffff0000, v10")
    A("v_add_f32 v8, v8, v6")
    A("v_add_f32 v9, v9, v7")
    A("v_cvt_pk_bf16_f32 v10, v8, v9")
    A("s_mov_b64 exec, 15")
    A("buffer_store_dword v10, v231, s[52:55], s75 offen")
    A("s_cmp_lg_u32 s2, 0")
    A("s_cbranch_scc1 L_h_done")
    A("s_mov_b64 exec, 1")
    A(f"buffer_store_dword v4, v231, s[44:47], 0 offen offset:{EPOCH} sc1")
    A.label("L_h_done", pad=False)
    if stamps:
        A("s_mov_b64 exec, -1")
        A("s_waitcnt vmcnt(0)")
        stamp(7)
        A("s_cmp_lg_u32 s3, 3")
        A("s_cbranch_scc1 L_end")
        stamp_out([0, 4, 5, 6, 7])
    A("s_endpgm")

    A.raw(".p2align 6")
    A.label("L_stream", pad=False)
    A("s_sub_u32 s3, s3, 4")
    A("s_lshl_b32 s56, s33, 2")
    A("s_add_u32 s56, s56, s32")
    A("s_lshl_b32 s56, s56, 19")
    A("s_lshl_b32 s57, s3, 12")
    A("v_lshlrev_b32 v4, 4, v1")
    A("v_add_u32 v1, s57, v4")
    A("v_and_b32 v4, 2, v0")
    A("v_cmp_ne_u32 s[80:81], 0, v4")
    A("v_and_b32 v4, 1, v0")
    A("v_cmp_ne_u32 s[82:83], 0, v4")
    A("s_mov_b32 s42, 0x80000")
    A("s_waitcnt lgkmcnt(0)")
    A("s_add_u32 s40, s6, s56")
    A("s_addc_u32 s41, s7, 0")
    A("s_add_u32 s48, s8, s56")
    A("s_addc_u32 s49, s9, 0")
    RING, SC, AO = 64, 8, 16

    def issue(pc, sreg, pol=pol):
        for t in range(4):
            r = RING + 16 * pc + 4 * t
            A(f"buffer_load_dwordx4 v[{r}:{r+3}], v1, s[40:43], {sreg} offen offset:{1024*t} {pol}")

    A("s_barrier")
    for pc in range(8):
        if 4 * pc >= P:
            A(f"s_waitcnt vmcnt({P-4})")
        A(f"s_mov_b32 s58, {16384*pc}")
        issue(pc, "s58")
    for r in range(8):
        A(f"v_mov_b32 v{AO+r}, 0")
    A("v_lshlrev_b32 v24, 4, v2")
    A("s_barrier")
    A(f"ds_read_b128 v[4:7], v24 offset:{Q_LDS}")
    stamp(1)
    A("s_mov_b32 s59, 0")
    A(f"s_mov_b32 s60, {8*16384}")
    A("s_waitcnt lgkmcnt(0)")

    def pace_issue(pc, pl):
        if P <= 28:
            A(f"s_waitcnt vmcnt({P-4})")
        A(f"s_add_u32 s58, s60, {16384*pc}")
        issue(pc, "s58", pl)

    def kbody(pl):
        for r in range(6):
            A(f"v_mov_b32 v{SC+r}, v{SC+r+2}")
        BR, CR = 32, 36
        for pc in range(8):
            a = 24 + 4 * (pc & 1)
            if P > 28:
                A("s_waitcnt vmcnt(28)")
            for d in range(4):
                for t in range(4):
                    r = RING + 16 * pc + 4 * t + d
                    if d == 0:
                        A(f"v_dot2_f32_bf16 v{a+t}, v{r}, v{4+d}, 0")
                    else:
                        A(f"v_dot2c_f32_bf16 v{a+t}, v{r}, v{4+d}")
            pace_issue(pc, pl)
            A(f"v_add_f32_dpp v{a}, v{a}, v{a} row_ror:8 row_mask:0xf bank_mask:0x3")
            A(f"v_add_f32_dpp v{a+2}, v{a+2}, v{a+2} row_ror:8 row_mask:0xf bank_mask:0x3")
            A(f"v_add_f32_dpp v{a}, v{a+1}, v{a+1} row_ror:8 row_mask:0xf bank_mask:0xc")
            A(f"v_add_f32_dpp v{a+2}, v{a+3}, v{a+3} row_ror:8 row_mask:0xf bank_mask:0xc")
            bq = BR + (pc & 1)
            A(f"v_add_f32_dpp v{bq}, v{a}, v{a} row_shl:4 row_mask:0xf bank_mask:0x5")
            A(f"v_add_f32_dpp v{bq}, v{a+2}, v{a+2} row_shr:4 row_mask:0xf bank_mask:0xa")
            if pc & 1:
                cq = CR + ((pc >> 1) & 1)
                A(f"v_cndmask_b32 v34, v{BR+1}, v{BR}, s[80:81]")
                A(f"v_cndmask_b32 v35, v{BR}, v{BR+1}, s[80:81]")
                A(f"v_add_f32_dpp v{cq}, v34, v35 quad_perm:[2,3,0,1] row_mask:0xf bank_mask:0xf")
            if (pc & 3) == 3:
                A(f"v_cndmask_b32 v34, v{CR+1}, v{CR}, s[82:83]")
                A(f"v_cndmask_b32 v35, v{CR}, v{CR+1}, s[82:83]")
                A(f"v_add_f32_dpp v{SC+6+(pc>>2)}, v34, v35 quad_perm:[1,0,3,2] row_mask:0xf bank_mask:0xf")

    A.raw(".p2align 6")
    A.label("L_kloop")
    if vpol == pol:
        A("s_cmp_eq_u32 s59, 3")
        A("s_cselect_b32 s40, s48, s40")
        A("s_cselect_b32 s41, s49, s41")
        A("s_cselect_b32 s60, 0, s60")
    kbody(pol)
    A(f"s_add_u32 s60, s60, {8*16384}")
    A("s_add_u32 s59, s59, 1")
    A(f"s_cmp_lt_u32 s59, {4 if vpol == pol else 3}")
    A("s_cbranch_scc1 L_kloop")
    if vpol != pol:
        A("s_mov_b32 s40, s48")
        A("s_mov_b32 s41, s49")
        A("s_mov_b32 s60, 0")
        kbody(vpol)
        A(f"s_add_u32 s60, s60, {8*16384}")
    stamp(2)
    A(f"s_mov_b32 s56, 0x{SCALE:08x}")
    A(f"s_mov_b32 s57, 0x{LOG2E:08x}")
    for n in range(0, 8, 2):
        A(f"v_cvt_pk_bf16_f32 v{24+n}, v{SC+n}, v{SC+n+1}")
    for n in range(0, 8, 2):
        A(f"v_lshlrev_b32 v{SC+n}, 16, v{24+n}")
        A(f"v_and_b32 v{SC+n+1}, 0xffff0000, v{24+n}")
    for n in range(8):
        A(f"v_mul_f32 v{SC+n}, s56, v{SC+n}")
    for n in range(0, 8, 2):
        A(f"v_cvt_pk_bf16_f32 v{24+n}, v{SC+n}, v{SC+n+1}")
    for n in range(0, 8, 2):
        A(f"v_lshlrev_b32 v{SC+n}, 16, v{24+n}")
        A(f"v_and_b32 v{SC+n+1}, 0xffff0000, v{24+n}")
    A(f"v_max3_f32 v32, v{SC}, v{SC+1}, v{SC+2}")
    A(f"v_max3_f32 v33, v{SC+3}, v{SC+4}, v{SC+5}")
    A(f"v_max3_f32 v32, v32, v{SC+6}, v{SC+7}")
    A("v_max_f32 v32, v32, v33")
    allreduce("v_max_f32", 32, 33)
    for n in range(8):
        A(f"v_sub_f32 v{SC+n}, v{SC+n}, v32")
    for n in range(8):
        A(f"v_mul_f32 v{SC+n}, s57, v{SC+n}")
    for n in range(8):
        A(f"v_exp_f32 v{SC+n}, v{SC+n}")
    for n in range(0, 8, 2):
        A(f"v_add_f32 v{24+n}, v{SC+n}, v{SC+n+1}")
    A("v_add_f32 v24, v24, v26")
    A("v_add_f32 v28, v28, v30")
    A("v_add_f32 v33, v24, v28")
    for n in range(8):
        A(f"v_mov_b32_dpp v{24+n}, v{SC+n} row_ror:8 row_mask:0xf bank_mask:0xf")
    for n in range(8):
        A(f"v_cvt_pk_bf16_f32 v{SC+n}, v{SC+n}, v{24+n}")
    allreduce("v_add_f32", 33, 36, levels=(1, 2, 8, 4, 16, 32))
    A("v_mov_b32 v34, 1")
    A("v_mov_b32 v35, 0")
    A("s_lshl_b32 s56, s3, 4")
    A("v_mov_b32 v36, s56")
    A("s_mov_b64 exec, 1")
    A(f"ds_write_b128 v36, v[32:35] offset:{MLL}")
    A("s_mov_b64 exec, -1")
    A("s_mov_b32 s59, 0")

    def vbody(last):
        for pc in range(8):
            if last:
                A(f"s_waitcnt vmcnt({28-4*pc})")
            elif P > 28:
                A("s_waitcnt vmcnt(28)")
            for pr in range(2):
                t0 = 24 + 8 * pr
                ra = RING + 16 * pc + 8 * pr
                rb = ra + 4
                for q in range(4):
                    A(f"v_perm_b32 v{t0+2*q}, v{rb+q}, v{ra+q}, s35")
                    A(f"v_perm_b32 v{t0+2*q+1}, v{rb+q}, v{ra+q}, s36")
            if not last:
                pace_issue(pc, vpol)
            for pr in range(2):
                t0 = 24 + 8 * pr
                lane = bitrev4(4 * (pc & 3) + 2 * pr)
                for n in range(8):
                    A(f"v_dot2c_f32_bf16_dpp v{AO+n}, v{SC+(pc>>2)}, v{t0+n} row_newbcast:{lane} row_mask:0xf bank_mask:0xf")

    A.raw(".p2align 6")
    A.label("L_vloop")
    vbody(False)
    for r in range(6):
        A(f"v_mov_b32 v{SC+r}, v{SC+r+2}")
    A(f"s_add_u32 s60, s60, {8*16384}")
    A("s_add_u32 s59, s59, 1")
    A("s_cmp_lt_u32 s59, 3")
    A("s_cbranch_scc1 L_vloop")
    A("v_lshlrev_b32 v40, 4, v2")
    A("v_lshl_add_u32 v40, v3, 2, v40")
    A("s_lshl_b32 s56, s3, 8")
    A("v_add_u32 v40, s56, v40")
    vbody(True)
    for c in range(4):
        A(f"v_permlane32_swap_b32 v{AO+c}, v{AO+c+4}")
    for c in range(4):
        A(f"v_add_f32 v{AO+c}, v{AO+c}, v{AO+c+4}")
    for c in range(2):
        A(f"v_permlane16_swap_b32 v{AO+c}, v{AO+c+2}")
    for c in range(2):
        A(f"v_add_f32 v{AO+c}, v{AO+c}, v{AO+c+2}")
    A(f"v_cvt_pk_bf16_f32 v24, v{AO}, v{AO+1}")
    A(f"ds_write_b32 v40, v24 offset:{O_LDS}")
    stamp(3)
    A("s_waitcnt lgkmcnt(0)")
    A("s_barrier")
    if stamps:
        A("s_cmp_lg_u32 s3, 0")
        A("s_cbranch_scc1 L_end")
        stamp_out([1, 2, 3])
    A.label("L_end", pad=False)
    A("s_endpgm")
    A.raw("L_code_end:")
    A.raw('.section .rodata,"a"')
    A.raw(".p2align 6")
    A.raw(f".amdhsa_kernel {NAME}_kernel")
    A.raw("  .amdhsa_next_free_vgpr 256")
    A.raw("  .amdhsa_next_free_sgpr 102")
    A.raw("  .amdhsa_accum_offset 256")
    A.raw("  .amdhsa_group_segment_fixed_size 0")
    A.raw("  .amdhsa_kernarg_size 104")
    A.raw("  .amdhsa_user_sgpr_count 2")
    A.raw("  .amdhsa_user_sgpr_kernarg_segment_ptr 1")
    A.raw("  .amdhsa_system_sgpr_workgroup_id_x 1")
    A.raw("  .amdhsa_float_denorm_mode_32 3")
    A.raw("  .amdhsa_float_denorm_mode_16_64 3")
    A.raw(".end_amdhsa_kernel")
    return A


if __name__ == "__main__":
    out = sys.argv[1]
    kw = {}
    for a in sys.argv[2:]:
        for kv in a.split(","):
            k, v = kv.split("=")
            kw[k] = int(v) if v.lstrip("-").isdigit() else ("" if v == "none" else v)
    A = gen(**kw)
    open(out, "w").write(A.text())
    print(out, "instructions:", A.ninstr)
```

```python
import sys
from asmlib import Asm

NAME = "gated_mix__gqa_block_cached__geglu_ffn__decode"

EPOCH = 0
QP = 0x10000
FP = 0x60000
ML = 0xA0000
HINT = 0xB0000
REC = 0x100000
YB = 0x200000
WS_BYTES = 0x480000
Q_LDS, OL, RED, MLL, QF, GF, SCL, LDS_BYTES = 0, 256, 512, 1024, 1088, 1104, 1120, 2048
SPIN = 60000
LOG2E = 0x3FB8AA3B
SCALE = 0x3DB504F3
DPP = "row_mask:0xf bank_mask:0xf"


def bitrev4(t):
    return ((t & 1) << 3) | ((t & 2) << 1) | ((t & 4) >> 1) | ((t & 8) >> 3)


def gen(P=16, stamps=0, pol="nt", wpol="nt", sleep=1, prefetch=1, hprio=1, early=1, sprio=0, ysleep=1, park=4, rsleep=1, hsleep=8, noq=0, noh=0, hstop=0, ydelay=0, rot=0):
    A = Asm()
    hdr = open("cdna_kernels/%s.s.ref" % NAME).read().split("; Override")[0]
    A.raw(hdr.rstrip())
    A.raw(f"; @launch grid=(256,1,1) block=(512,1,1) lds={LDS_BYTES}")
    A.raw('.amdgcn_target "amdgcn-amd-amdhsa--gfx950"')
    A.raw(".text")
    A.raw(f".globl {NAME}_kernel")
    A.raw(".p2align 8")
    A.raw(f".type {NAME}_kernel,@function")
    A.raw(f"{NAME}_kernel:")

    def stamp(k):
        if stamps:
            A(f"s_memrealtime s[{84+2*k}:{85+2*k}]")

    def stamp_out(role_sreg):
        if not stamps:
            return
        A("s_waitcnt lgkmcnt(0)")
        A("s_lshl_b32 s56, s2, 9")
        A(f"s_lshl_b32 s57, {role_sreg}, 6")
        A("s_add_u32 s56, s56, s57")
        A("s_add_u32 s56, s56, 0x10000000")
        A("s_add_u32 s52, s28, s56")
        A("s_addc_u32 s53, s29, 0")
        A("s_mov_b32 s54, 64")
        A("s_mov_b32 s55, 0x20000")
        A("v_mov_b32 v2, 0")
        A("s_mov_b64 exec, 1")
        for k in range(8):
            A(f"v_mov_b32 v16, s{84+2*k}")
            A(f"v_mov_b32 v17, s{85+2*k}")
            A(f"buffer_store_dwordx2 v[16:17], v2, s[52:55], 0 offen offset:{8*k}")
            A("s_nop 1")
        A("s_mov_b64 exec, -1")

    def check(regs, bad, tmp, T="v4"):
        for n, r in enumerate(regs):
            A(f"v_bitop3_b32 v{tmp}, v{r}, v{r+2}, {T} bitop3:0x7e")
            A(f"v_bitop3_b32 v{tmp+1}, v{r+1}, v{r+3}, {T} bitop3:0x7e")
            if n == 0:
                A(f"v_and_or_b32 v{bad}, v{tmp}, s37, v{tmp+1}")
            else:
                A(f"v_and_or_b32 v{tmp}, v{tmp}, s37, v{tmp+1}")
                A(f"v_or_b32 v{bad}, v{bad}, v{tmp}")

    def poll(lbl, regs, voff, soff, imm, bad, tmp, slp=sleep):
        A(f"s_mov_b32 s57, {SPIN}")
        A.label(lbl)
        for n, r in enumerate(regs):
            A(f"buffer_load_dwordx4 v[{r}:{r+3}], {voff}, s[44:47], {soff} offen offset:{imm[n]} sc1")
        A("s_waitcnt vmcnt(0)")
        check(regs, bad, tmp)
        A(f"v_cmp_ne_u32 vcc, 0, v{bad}")
        A(f"s_cbranch_vccz {lbl}_ok")
        if slp:
            A(f"s_sleep {slp}")
        A("s_sub_u32 s57, s57, 1")
        A(f"s_cbranch_scc0 {lbl}")
        A.label(lbl + "_ok", pad=False)

    def lds_poll(lbl, rd, flagreg, slp):
        A(f"s_mov_b32 s57, {SPIN*16}")
        A.label(lbl)
        for r in rd:
            A(r)
        A("s_waitcnt lgkmcnt(0)")
        A(f"v_cmp_ne_u32 vcc, 1, v{flagreg}")
        A(f"s_cbranch_vccz {lbl}_ok")
        A(f"s_sleep {slp}")
        A("s_sub_u32 s57, s57, 1")
        A(f"s_cbranch_scc0 {lbl}")
        A.label(lbl + "_ok", pad=False)

    def allreduce(op, regs, tmps, levels):
        ctrl = {1: "quad_perm:[1,0,3,2]", 2: "quad_perm:[2,3,0,1]", 4: "row_ror:4", 8: "row_ror:8", "hm": "row_half_mirror"}
        for lv in levels:
            if lv in ctrl:
                for r in regs:
                    A(f"{op}_dpp v{r}, v{r}, v{r} {ctrl[lv]} {DPP}")
            else:
                for r, t in zip(regs, tmps):
                    A(f"v_mov_b32 v{t}, v{r}")
                for r, t in zip(regs, tmps):
                    A(f"v_permlane{lv}_swap_b32 v{r}, v{t}")
                for r, t in zip(regs, tmps):
                    A(f"{op} v{r}, v{r}, v{t}")

    def round_pair(a, b, t):
        A(f"v_cvt_pk_bf16_f32 v{t}, v{a}, v{b}")
        A(f"v_lshlrev_b32 v{a}, 16, v{t}")
        A(f"v_and_b32 v{b}, 0xffff0000, v{t}")

    A("s_cmp_ge_u32 s2, 256")
    A("s_cbranch_scc1 L_end")
    A("s_load_dwordx16 s[4:19], s[0:1], 0")
    A("s_load_dwordx8 s[20:27], s[0:1], 64")
    A("s_load_dwordx2 s[28:29], s[0:1], 96")
    stamp(0)
    if stamps:
        for k in range(1, 8):
            A(f"s_mov_b64 s[{84+2*k}:{85+2*k}], 0")
    A("v_lshrrev_b32 v1, 6, v0")
    A("v_and_b32 v2, 15, v0")
    A("v_readfirstlane_b32 s3, v1")
    A("v_and_b32 v1, 63, v0")
    A("v_lshrrev_b32 v3, 4, v1")
    A("s_and_b32 s34, s2, 7")
    A("s_lshr_b32 s56, s2, 6")
    A("s_lshl_b32 s56, s56, 3")
    A("s_add_u32 s30, s34, s56")
    A("s_lshr_b32 s38, s2, 3")
    A("s_and_b32 s38, s38, 7")
    A("s_and_b32 s32, s38, 3")
    A("s_lshr_b32 s31, s38, 2")
    A("s_lshl_b32 s33, s31, 5")
    A("s_add_u32 s33, s33, s30")
    A("s_mov_b32 s35, 0x05040100")
    A("s_mov_b32 s36, 0x07060302")
    A("s_movk_i32 s37, 0xff")
    A("s_mov_b32 s43, 0x20000")
    A("s_mov_b32 s47, 0x20000")
    A("s_mov_b32 s51, 0x20000")
    A("s_mov_b32 s55, 0x20000")
    A(f"s_mov_b32 s46, {WS_BYTES}")
    A("s_cmp_ge_u32 s3, 4")
    A("s_cbranch_scc1 L_stream")

    if noh:
        A("s_waitcnt lgkmcnt(0)")
        A("s_barrier")
        A("s_barrier")
        A("s_branch L_h_done")
    if hprio:
        A(f"s_setprio {hprio}")
    A("s_lshr_b32 s63, s2, 3")
    A("s_lshr_b32 s64, s2, 2")
    A("s_and_b32 s64, s64, 1")
    A("s_and_b32 s65, s2, 3")
    A("s_movk_i32 s56, 3456")
    A("s_lshl_b32 s57, s63, 7")
    A("s_movk_i32 s59, 512")
    A("s_movk_i32 s60, 256")
    A("s_movk_i32 s61, 64")
    A("s_movk_i32 s71, 16")
    A("s_lshl_b32 s62, s2, 10")
    A(f"s_add_u32 s62, s62, {FP}")
    A(f"s_mov_b32 s42, {640*3456}")
    A("s_cmp_lg_u32 s3, 0")
    A("s_cbranch_scc1 L_h_notq")
    A("s_movk_i32 s56, 8192")
    A("s_lshl_b32 s57, s30, 8")
    A("s_lshl_b32 s66, s31, 7")
    A("s_add_u32 s57, s57, s66")
    A(f"s_mov_b32 s59, {32*4096}")
    A("s_movk_i32 s60, 64")
    A("s_movk_i32 s61, 16")
    A("s_movk_i32 s71, 1024")
    A("s_lshl_b32 s62, s30, 12")
    A("s_add_u32 s62, s62, s66")
    A("s_lshl_b32 s66, s32, 8")
    A("s_add_u32 s62, s62, s66")
    A(f"s_add_u32 s62, s62, {QP}")
    A(f"s_mov_b32 s42, {640*8192}")
    A("s_mov_b32 s65, s32")
    A.label("L_h_notq", pad=False)
    A("s_mul_i32 s66, s65, 160")
    A("s_mul_i32 s66, s66, s56")
    A("s_add_u32 s57, s57, s66")
    A("s_mul_i32 s58, s65, 320")
    A("s_mul_i32 s67, s56, 25")
    A("v_lshlrev_b32 v5, 3, v3")
    A("v_mul_lo_u32 v5, v5, s56")
    A("v_lshl_add_u32 v5, v2, 3, v5")
    A("v_lshrrev_b32 v6, 3, v2")
    A("v_mul_u32_u24 v6, 1280, v6")
    A("v_lshl_add_u32 v6, v3, 4, v6")
    A("v_mov_b32 v7, 0")
    A("s_movk_i32 s50, 2560")
    A("s_cmp_eq_u32 s3, 0")
    A("s_cselect_b32 s66, 0, s2")
    A("s_cmp_ge_u32 s3, 2")
    A("s_cselect_b32 s66, 255, s66")
    A("s_waitcnt lgkmcnt(0)")
    A("s_mov_b32 s44, s28")
    A("s_mov_b32 s45, s29")
    A("s_mov_b32 s48, s4")
    A("s_mov_b32 s49, s5")
    A("s_cmp_eq_u32 s64, 0")
    A("s_cselect_b32 s40, s16, s18")
    A("s_cselect_b32 s41, s17, s19")
    A("s_cmp_eq_u32 s3, 0")
    A("s_cselect_b32 s40, s10, s40")
    A("s_cselect_b32 s41, s11, s41")
    A("s_cmp_ge_u32 s66, 216")
    A("s_cbranch_scc1 L_h_idle0")
    W0, X0, FR0, AC0 = 16, 96, 116, 132
    for ks in range(5):
        A(f"buffer_load_dwordx4 v[{X0+4*ks}:{X0+4*ks+3}], v6, s[48:51], s58 offen offset:{64*ks}")
        for e in range(8):
            r = W0 + 2 * (8 * ks + e)
            A(f"buffer_load_dwordx2 v[{r}:{r+1}], v5, s[40:43], s57 offen {wpol}")
            A(f"s_add_u32 s57, s57, {'s56' if e < 7 else 's67'}")
    A(f"buffer_load_dword v4, v7, s[44:47], 0 offen offset:{EPOCH} sc1")
    A("s_barrier")
    stamp(1)
    A("v_lshrrev_b32 v8, 1, v3")
    A("v_mul_lo_u32 v8, v8, s59")
    A("v_lshrrev_b32 v9, 3, v2")
    A("v_mul_lo_u32 v9, v9, s60")
    A("v_add_u32 v8, v8, v9")
    A("v_bfe_u32 v9, v2, 1, 2")
    A("v_mul_lo_u32 v9, v9, s61")
    A("v_add_u32 v8, v8, v9")
    A("v_and_b32 v9, 1, v2")
    A("v_lshlrev_b32 v9, 1, v9")
    A("v_and_b32 v10, 1, v3")
    A("v_add_u32 v9, v9, v10")
    A("v_mul_lo_u32 v9, v9, s71")
    A("v_add_u32 v8, v8, v9")
    A("v_cmp_eq_u32 s[68:69], 1, v10")
    for ks in range(5):
        A(f"s_waitcnt vmcnt({46-9*(ks+1)})")
        for c in range(4):
            for d in range(4):
                lo = W0 + 2 * (8 * ks + 2 * d) + (c >> 1)
                hi = W0 + 2 * (8 * ks + 2 * d + 1) + (c >> 1)
                A(f"v_perm_b32 v{FR0+4*c+d}, v{hi}, v{lo}, {'s36' if c & 1 else 's35'}")
        for c in range(4):
            cc = "0" if ks == 0 else f"v[{AC0+4*c}:{AC0+4*c+3}]"
            A(f"v_mfma_f32_16x16x32_bf16 v[{AC0+4*c}:{AC0+4*c+3}], v[{X0+4*ks}:{X0+4*ks+3}], v[{FR0+4*c}:{FR0+4*c+3}], {cc}")
    A("s_waitcnt vmcnt(0)")
    stamp(2)
    if hstop == 1:
        A("s_branch L_h_stop")
    A("v_add_u32 v4, 1, v4")
    A("v_mov_b32 v13, v4")
    A("v_mov_b32 v15, v4")
    A(f"v_cndmask_b32 v12, v{AC0}, v{AC0+8}, s[68:69]")
    A(f"v_cndmask_b32 v14, v{AC0+4}, v{AC0+12}, s[68:69]")
    A("v_bfi_b32 v12, s37, v4, v12")
    A("v_bfi_b32 v14, s37, v4, v14")
    A("buffer_store_dwordx4 v[12:15], v8, s[44:47], s62 offen sc1")
    stamp(3)
    if hstop == 2:
        A("s_branch L_h_stop")
    A("s_branch L_h_b")

    A.label("L_h_idle0", pad=False)
    A("s_cmp_lg_u32 s3, 3")
    A("s_cbranch_scc1 L_h_noinit")
    A("v_lshlrev_b32 v9, 3, v1")
    A("v_mov_b32 v10, 0")
    A("v_mov_b32 v11, 0")
    A(f"ds_write_b64 v9, v[10:11] offset:{MLL}")
    A("s_waitcnt lgkmcnt(0)")
    A.label("L_h_noinit", pad=False)
    A("s_barrier")
    if hstop in (1, 2):
        A("s_branch L_h_stop")
    if prefetch:
        A("s_cmp_lg_u32 s3, 3")
        A("s_cbranch_scc1 L_h_nopf")
        A("s_getpc_b64 s[52:53]")
        A.raw("L_pc:")
        A(f"s_sub_u32 s52, s52, L_pc-{NAME}_kernel")
        A("s_subb_u32 s53, s53, 0")
        A(f"s_mov_b32 s54, L_code_end-{NAME}_kernel")
        A("v_lshlrev_b32 v9, 12, v1")
        A("s_lshr_b32 s56, s2, 3")
        A("s_lshl_b32 s56, s56, 7")
        A("s_mov_b64 exec, 0xff")
        A("buffer_load_dword v200, v9, s[52:55], s56 offen")
        A("s_mov_b64 exec, -1")
        A.label("L_h_nopf", pad=False)
    A("s_cmp_lg_u32 s3, 2")
    A("s_cbranch_scc1 L_h_b")
    A("s_mov_b32 s52, s22")
    A("s_mov_b32 s53, s23")
    A("s_movk_i32 s54, 1280")
    A("v_and_b32 v9, 31, v1")
    A("v_lshlrev_b32 v9, 3, v9")
    A("v_lshrrev_b32 v10, 5, v1")
    A("v_mul_u32_u24 v11, 1280, v10")
    A("v_add_u32 v11, v11, v9")
    for t in range(5):
        A(f"buffer_load_dwordx2 v[{200+2*t}:{201+2*t}], v11, s[48:51], 0 offen offset:{256*t}")
        A(f"buffer_load_dwordx2 v[{210+2*t}:{211+2*t}], v9, s[52:55], 0 offen offset:{256*t}")
    A("v_mov_b32 v12, 0")
    A("s_waitcnt vmcnt(0)")
    for t in range(10):
        A(f"v_lshlrev_b32 v220, 16, v{200+t}")
        A(f"v_lshlrev_b32 v221, 16, v{210+t}")
        A(f"v_and_b32 v222, 0xffff0000, v{200+t}")
        A(f"v_and_b32 v223, 0xffff0000, v{210+t}")
        A("v_mul_f32 v220, v220, v221")
        A("v_mul_f32 v222, v222, v223")
        round_pair(220, 222, 224)
        A("v_add_f32 v12, v12, v220")
        A("v_add_f32 v12, v12, v222")
    allreduce("v_add_f32", [12], [220], (1, 2, 8, 4, 16))
    A("v_cvt_pk_bf16_f32 v12, v12, v12")
    A("v_and_b32 v12, 0xffff0000, v12")
    A(f"v_mul_f32 v12, 0x{LOG2E ^ 0x80000000:08x}, v12")
    A("v_exp_f32 v12, v12")
    A("v_add_f32 v12, 1.0, v12")
    A("v_rcp_f32 v12, v12")
    A("v_cvt_pk_bf16_f32 v12, v12, v12")
    A("v_and_b32 v12, 0xffff0000, v12")
    A("v_lshlrev_b32 v10, 2, v10")
    A(f"ds_write_b32 v10, v12 offset:{GF+4}")
    A("v_mov_b32 v11, 1")
    A("s_waitcnt lgkmcnt(0)")
    A(f"ds_write_b32 v7, v11 offset:{GF}")

    A.label("L_h_b")
    if hstop == 3:
        A("s_branch L_h_stop")
    A("s_lshl_b32 s56, s30, 3")
    A("s_add_u32 s72, s56, s38")
    A(f"s_mul_i32 s56, s72, {16*1280}")
    A("s_add_u32 s40, s12, s56")
    A("s_addc_u32 s41, s13, 0")
    A(f"s_mov_b32 s42, {16*1280}")
    A(f"s_mul_i32 s56, s2, {8*1280}")
    A("s_add_u32 s52, s20, s56")
    A("s_addc_u32 s53, s21, 0")
    A("s_cmp_lt_u32 s2, 216")
    A(f"s_cselect_b32 s54, {8*1280}, 0")
    A("s_cselect_b32 s52, s52, s20")
    A("s_cselect_b32 s53, s53, s21")
    A("s_lshl_b32 s56, s3, 8")
    A("s_lshl_b32 s58, s3, 6")
    A("s_add_u32 s58, s58, 1024")
    A("v_mul_u32_u24 v8, 5120, v3")
    A("v_lshl_add_u32 v5, v2, 4, v8")
    A("v_lshl_add_u32 v6, v2, 2, v8")
    A("v_mul_u32_u24 v8, 2560, v3")
    A("v_lshl_add_u32 v9, v2, 4, v8")
    A("v_lshl_add_u32 v10, v2, 2, v8")
    for e in range(4):
        A(f"buffer_load_dwordx4 v[{16+4*e}:{19+4*e}], v5, s[40:43], s56 offen offset:{1280*e} {wpol}")
        A(f"buffer_load_dword v{32+e}, v6, s[40:43], s58 offen offset:{1280*e} {wpol}")
    for e in range(2):
        A(f"buffer_load_dwordx4 v[{36+4*e}:{39+4*e}], v9, s[52:55], s56 offen offset:{1280*e} {wpol}")
        A(f"buffer_load_dword v{44+e}, v10, s[52:55], s58 offen offset:{1280*e} {wpol}")
    A("s_cmp_lg_u32 s3, 0")
    A("s_cbranch_scc1 L_h_noq")
    A("v_lshlrev_b32 v12, 4, v1")
    A("s_lshl_b32 s56, s33, 12")
    A(f"s_add_u32 s56, s56, {QP}")
    QL = 148
    poll("L_pq", [QL + 4 * i for i in range(4)], "v12", "s56", [1024 * i for i in range(4)], 10, 164)
    for n in range(8):
        A(f"v_and_b32 v{QL+2*n}, 0xffffff00, v{QL+2*n}")
    for n in range(4):
        A(f"v_permlane32_swap_b32 v{QL+2*n}, v{QL+2*(n+4)}")
    for n in range(4):
        A(f"v_add_f32 v{QL+2*n}, v{QL+2*n}, v{QL+2*(n+4)}")
    for n in range(2):
        A(f"v_permlane16_swap_b32 v{QL+2*n}, v{QL+2*(n+2)}")
    for n in range(2):
        A(f"v_add_f32 v{QL+2*n}, v{QL+2*n}, v{QL+2*(n+2)}")
    A(f"v_cvt_pk_bf16_f32 v10, v{QL}, v{QL+2}")
    A("v_lshlrev_b32 v9, 4, v2")
    A("v_lshl_add_u32 v9, v3, 2, v9")
    A(f"ds_write_b32 v9, v10 offset:{Q_LDS}")
    A("v_mov_b32 v10, 1")
    A("v_mov_b32 v11, v4")
    A("s_waitcnt lgkmcnt(0)")
    A(f"ds_write_b64 v7, v[10:11] offset:{QF}")
    stamp(6)
    A.label("L_h_noq", pad=False)

    FO, FD = 48, 68
    lds_poll("L_pt", [f"ds_read_b64 v[10:11], v7 offset:{QF}"], 10, 2)
    A("v_mov_b32 v4, v11")
    A("v_lshrrev_b32 v9, 5, v1")
    A("v_lshlrev_b32 v9, 2, v9")
    lds_poll("L_pg", [f"ds_read_b32 v10, v7 offset:{GF}", f"ds_read_b32 v78, v9 offset:{GF+4}"], 10, 2)
    A("v_sub_f32 v79, 1.0, v78")
    A("v_cvt_pk_bf16_f32 v79, v79, v79")
    A("v_and_b32 v79, 0xffff0000, v79")
    A("s_waitcnt vmcnt(0)")
    for c in range(8):
        for d in range(2):
            A(f"v_perm_b32 v{FO+2*c+d}, v{16+4*(2*d+1)+(c>>1)}, v{16+4*(2*d)+(c>>1)}, {'s36' if c & 1 else 's35'}")
        A(f"v_perm_b32 v{FD+c}, v{40+(c>>1)}, v{36+(c>>1)}, {'s36' if c & 1 else 's35'}")
    for cc in range(2):
        for d in range(2):
            A(f"v_perm_b32 v{FO+16+2*cc+d}, v{32+2*d+1}, v{32+2*d}, {'s36' if cc else 's35'}")
        A(f"v_perm_b32 v{FD+8+cc}, v45, v44, {'s36' if cc else 's35'}")
    Z = 140
    if hstop == 4:
        A("s_branch L_h_stop")
    for k in range(6):
        A(f"v_mov_b32 v{Z+k}, 0")
    A("v_and_b32 v10, 1, v3")
    A("v_cmp_eq_u32 s[68:69], 1, v10")
    A("s_cmp_ge_u32 s2, 216")
    A("s_cbranch_scc1 L_h_nof2")
    A("v_and_b32 v9, 7, v2")
    A("v_lshlrev_b32 v9, 10, v9")
    A("v_lshrrev_b32 v10, 3, v2")
    A("v_lshl_add_u32 v9, v10, 9, v9")
    A("v_lshl_add_u32 v9, v3, 4, v9")
    A("s_lshr_b32 s56, s2, 3")
    A("s_lshl_b32 s56, s56, 13")
    A("s_lshl_b32 s58, s34, 6")
    A("s_add_u32 s56, s56, s58")
    A(f"s_add_u32 s56, s56, {FP}")
    poll("L_pf", [80], "v9", "s56", [0], 10, 84, slp=4)
    val, tmp, U = [80, 82], [81, 83], [84, 85]
    for r in val:
        A(f"v_and_b32 v{r}, 0xffffff00, v{r}")
    allreduce("v_add_f32", val, None, (1, 2))
    round_pair(80, 82, 81)
    A("s_mov_b32 s56, 0x3d372713")
    A("s_mov_b32 s57, 0xc0135761")
    for n in range(2):
        A(f"v_mov_b32_dpp v{U[n]}, v{val[n]} row_shl:4 {DPP} bound_ctrl:0")
    for n in range(2):
        A(f"v_mul_f32 v{tmp[n]}, v{val[n]}, v{val[n]}")
    for n in range(2):
        A(f"v_mul_f32 v{tmp[n]}, v{tmp[n]}, v{val[n]}")
    for n in range(2):
        A(f"v_fma_f32 v{tmp[n]}, v{tmp[n]}, s56, v{val[n]}")
    for n in range(2):
        A(f"v_mul_f32 v{tmp[n]}, s57, v{tmp[n]}")
    for n in range(2):
        A(f"v_exp_f32 v{tmp[n]}, v{tmp[n]}")
    for n in range(2):
        A(f"v_add_f32 v{tmp[n]}, 1.0, v{tmp[n]}")
    for n in range(2):
        A(f"v_rcp_f32 v{tmp[n]}, v{tmp[n]}")
    for n in range(2):
        A(f"v_mul_f32 v{val[n]}, v{val[n]}, v{tmp[n]}")
    round_pair(80, 82, 81)
    for n in range(2):
        A(f"v_mul_f32 v{val[n]}, v{val[n]}, v{U[n]}")
    A("v_cvt_pk_bf16_f32 v96, v80, v82")
    A("v_mov_b32 v97, 0")
    A("v_mov_b32 v98, 0")
    A("v_mov_b32_dpp v96, v96 row_shr:4 row_mask:0xf bank_mask:0xa")
    A("v_mov_b32 v99, v96")
    for c in range(10):
        a = "v[98:99]" if c & 1 else "v[96:97]"
        f = FD + (c & ~1)
        A(f"v_mfma_f32_16x16x16_bf16 v[{100+4*c}:{103+4*c}], {a}, v[{f}:{f+1}], 0")
    for c in range(4):
        A(f"v_cndmask_b32 v{Z+c}, v{100+4*c}, v{100+4*(c+4)}, s[68:69]")
    for c in range(4):
        A(f"v_mul_f32 v{Z+c}, v{Z+c}, v79")
    A(f"v_mul_f32 v{Z+4}, v132, v79")
    A(f"v_mul_f32 v{Z+5}, v136, v79")
    A.label("L_h_nof2")
    if stamps:
        A("s_cmp_eq_u32 s3, 0")
        A("s_cbranch_scc1 L_st6")
        stamp(6)
        A.label("L_st6", pad=False)
    if hstop == 5:
        A("s_branch L_h_stop")
    A("s_cmp_lg_u32 s3, 0")
    A("s_cbranch_scc1 L_h_noml")
    A("v_and_b32 v8, 3, v1")
    A("v_lshlrev_b32 v8, 4, v8")
    lds_poll("L_pl", [f"ds_read_b128 v[150:153], v8 offset:{MLL}"], 152, 4)
    A(f"s_mov_b32 s58, 0x{LOG2E:08x}")

    def stats(mr, lr, M, Lr, t):
        A(f"v_mov_b32 v{M}, v{mr}")
        allreduce("v_max_f32", [M], None, (1, 2))
        A(f"v_sub_f32 v{t}, v{mr}, v{M}")
        A(f"v_mul_f32 v{t}, s58, v{t}")
        A(f"v_exp_f32 v{t}, v{t}")
        A(f"v_mul_f32 v{Lr}, v{lr}, v{t}")
        allreduce("v_add_f32", [Lr], None, (1, 2))

    stats(150, 151, 154, 156, 158)
    A("v_add_u32 v156, 0x80, v156")
    A("v_bfi_b32 v154, s37, v4, v154")
    A("v_bfi_b32 v156, s37, v4, v156")
    A("v_mov_b32 v155, v4")
    A("v_mov_b32 v157, v4")
    A("s_lshl_b32 s56, s33, 6")
    A(f"s_add_u32 s56, s56, {ML}")
    A("s_lshl_b32 s59, s32, 4")
    A("v_mov_b32 v9, s59")
    A("s_mov_b64 exec, 1")
    A("buffer_store_dwordx4 v[154:157], v9, s[44:47], s56 offen sc1")
    A("s_mov_b64 exec, -1")
    poll("L_pm", [158], "v8", "s56", [0], 10, 162, slp=4)
    A("v_and_b32 v158, 0xffffff00, v158")
    A("v_and_b32 v160, 0xffffff00, v160")
    stats(158, 160, 159, 161, 162)
    A("v_rcp_f32 v161, v161")
    A("v_sub_f32 v162, v150, v159")
    A("v_mul_f32 v162, s58, v162")
    A("v_exp_f32 v162, v162")
    A("v_mov_b32 v163, 1")
    A("v_mul_f32 v162, v162, v161")
    A("v_lshrrev_b32 v8, 1, v8")
    A(f"ds_write_b64 v8, v[162:163] offset:{SCL}")
    A.label("L_h_noml")
    if hstop == 6:
        A("s_branch L_h_stop")
    A("s_lshl_b32 s73, s72, 12")
    A("s_lshl_b32 s56, s3, 10")
    A("s_add_u32 s73, s73, s56")
    A(f"s_add_u32 s73, s73, {REC}")
    A("v_and_b32 v8, 7, v1")
    A("s_lshl_b32 s56, s3, 6")
    A("v_lshl_add_u32 v146, v8, 3, s56")
    A("v_lshrrev_b32 v8, 3, v2")
    A("v_lshlrev_b32 v8, 7, v8")
    A("v_lshl_add_u32 v164, v3, 4, v8")
    A("v_lshlrev_b32 v147, 4, v1")
    A("v_lshrrev_b32 v8, 1, v3")
    A("v_lshlrev_b32 v8, 8, v8")
    A("v_lshl_add_u32 v148, v2, 4, v8")
    A("s_lshl_b32 s56, s34, 5")
    A("s_lshr_b32 s57, s2, 3")
    A("s_add_u32 s56, s56, s57")
    A("s_lshl_b32 s62, s56, 2")
    A(f"s_add_u32 s62, s62, {HINT}")
    A("s_mul_i32 s56, s56, 10240")
    A("s_mul_i32 s57, s3, 2560")
    A("s_add_u32 s56, s56, s57")
    A(f"s_add_u32 s74, s56, {YB}")
    A("v_and_b32 v10, 4, v2")
    A("v_cmp_eq_u32 s[70:71], 0, v10")
    for r in (9, 11, 13, 15, 37, 39):
        A(f"v_mov_b32 v{r}, v4")
    A("v_lshrrev_b32 v8, 3, v1")
    A("v_mul_u32_u24 v8, 10240, v8")
    A("v_and_b32 v10, 7, v1")
    A("v_lshl_add_u32 v149, v10, 4, v8")
    A("s_lshl_b32 s76, s2, 7")
    A(f"s_mul_i32 s56, s3, {64*10240}")
    A("s_add_u32 s76, s76, s56")
    A(f"s_add_u32 s76, s76, {YB}")
    A("s_lshl_b32 s63, s3, 8")
    A(f"s_add_u32 s63, s63, {HINT}")
    A("v_lshlrev_b32 v166, 2, v1")
    A("s_lshl_b32 s56, s3, 6")
    A("v_lshl_add_u32 v167, v10, 3, s56")
    A("s_mul_i32 s56, s2, 205")
    A("s_lshr_b32 s56, s56, 12")
    A("s_mul_i32 s57, s56, 20")
    A("s_sub_u32 s57, s2, s57")
    A("s_bfe_u32 s58, s57, 0x10002")
    A("s_mul_i32 s58, s58, 1280")
    A("s_lshl_b32 s59, s56, 8")
    A("s_add_u32 s58, s58, s59")
    A("s_and_b32 s59, s57, 1")
    A("s_lshl_b32 s59, s59, 7")
    A("s_add_u32 s58, s58, s59")
    A("s_bfe_u32 s59, s57, 0x10001")
    A("s_lshl_b32 s59, s59, 3")
    A("s_add_u32 s58, s58, s59")
    A("s_bfe_u32 s59, s57, 0x10003")
    A("s_lshl_b32 s59, s59, 2")
    A("s_add_u32 s78, s58, s59")
    A("s_bfe_u32 s58, s57, 0x10001")
    A("s_mul_i32 s58, s58, 1280")
    A("s_lshl_b32 s59, s56, 6")
    A("s_add_u32 s58, s58, s59")
    A("s_and_b32 s59, s57, 1")
    A("s_lshl_b32 s59, s59, 5")
    A("s_add_u32 s58, s58, s59")
    A("s_add_u32 s58, s58, 1024")
    A("s_cmp_ge_u32 s57, 16")
    A("s_cselect_b32 s78, s58, s78")
    A("s_cselect_b32 s58, 2, 4")
    A("v_lshlrev_b32 v165, s58, v1")
    A("s_mov_b32 s52, s24")
    A("s_mov_b32 s53, s25")
    A("s_movk_i32 s54, 2560")
    stamp(4)
    A("s_barrier")
    A("s_cmp_lg_u32 s3, 0")
    A("s_cbranch_scc1 L_h_nohint")
    A("s_mov_b64 exec, 1")
    A(f"buffer_store_dword v4, v7, s[44:47], s62 offen sc1")
    A("s_mov_b64 exec, -1")
    A.label("L_h_nohint", pad=False)
    poll("L_pr", [16], "v147", "s73", [0], 10, 32, slp=rsleep)
    A("v_and_b32 v16, 0xffffff00, v16")
    A("v_and_b32 v17, 0xffffff00, v18")
    allreduce("v_add_f32", [16, 17], [18, 19], (8, 16, 32))
    A(f"ds_write_b64 v146, v[16:17] offset:{OL}")
    A("s_waitcnt lgkmcnt(0)")
    A("s_barrier")
    stamp(2)
    A(f"ds_read_b128 v[16:19], v164 offset:{OL}")
    A(f"ds_read_b128 v[20:23], v164 offset:{OL+64}")
    A("s_waitcnt lgkmcnt(0)")
    for n in range(4):
        A(f"v_add_f32 v{16+n}, v{16+n}, v{20+n}")
    A("v_cvt_pk_bf16_f32 v24, v16, v17")
    A("v_cvt_pk_bf16_f32 v25, v18, v19")
    A("v_cndmask_b32 v32, 0, v24, s[70:71]")
    A("v_cndmask_b32 v33, 0, v25, s[70:71]")
    A("v_cndmask_b32 v34, v24, 0, s[70:71]")
    A("v_cndmask_b32 v35, v25, 0, s[70:71]")
    for c in (0, 1, 2, 3, 8, 9, 4, 5, 6, 7):
        acc = 100 + 4 * (c & 3) if c < 8 else 116 + 4 * (c - 8)
        a = "v[34:35]" if 4 <= c < 8 else "v[32:33]"
        cc = f"v[{acc}:{acc+3}]" if 4 <= c < 8 else "0"
        A(f"v_mfma_f32_16x16x16_bf16 v[{acc}:{acc+3}], {a}, v[{FO+2*c}:{FO+2*c+1}], {cc}")
    outs = [36, 38, 8, 10, 12, 14]
    accs = [116, 120, 100, 104, 108, 112]
    zs = [Z + 4, Z + 5, Z, Z + 1, Z + 2, Z + 3]
    for o, ac, z in zip(outs, accs, zs):
        A(f"v_fma_f32 v{o}, v{ac}, v78, v{z}")
        A(f"v_bfi_b32 v{o}, s37, v4, v{o}")
        if o == 38:
            A("s_mov_b64 exec, 0x0000ffff0000ffff") if False else None
    A("buffer_store_dwordx4 v[8:11], v147, s[44:47], s74 offen sc1")
    A("buffer_store_dwordx4 v[12:15], v147, s[44:47], s74 offen offset:1024 sc1")
    A("s_mov_b32 exec_lo, 0xffff")
    A("s_mov_b32 exec_hi, 0xffff")
    A("buffer_store_dwordx4 v[36:39], v148, s[44:47], s74 offen offset:2048 sc1")
    A("s_mov_b64 exec, -1")
    stamp(5)
    A("s_cmp_ge_u32 s2, 80")
    A("s_cbranch_scc1 L_h_done")
    A("s_mov_b32 s79, 0")
    A("s_mov_b64 s[64:65], 0")
    A(f"s_mov_b32 s57, {SPIN}")
    YL = 168
    A.label("L_py")
    A("buffer_load_dword v204, v166, s[44:47], s63 offen sc1")
    A("s_mov_b32 s66, 0")
    for gi in range(2):
        A(f"s_bitcmp1_b32 s79, {gi}")
        A(f"s_cbranch_scc1 L_py_l{gi}")
        A(f"s_cmp_lg_u32 s{64+gi}, -1")
        A(f"s_cbranch_scc1 L_py_l{gi}")
        A(f"s_bitset1_b32 s66, {gi}")
        for i in range(4 * gi, 4 * gi + 4):
            A(f"s_add_u32 s56, s76, {8*10240*i}")
            A(f"buffer_load_dwordx4 v[{YL+4*i}:{YL+4*i+3}], v149, s[44:47], s56 offen sc1")
        A.label(f"L_py_l{gi}", pad=False)
    A("s_waitcnt vmcnt(0)")
    for gi in range(2):
        A(f"s_bitcmp0_b32 s66, {gi}")
        A(f"s_cbranch_scc1 L_py_c{gi}")
        check([YL + 4 * i for i in range(4 * gi, 4 * gi + 4)], 10, 200)
        A("v_cmp_ne_u32 vcc, 0, v10")
        A(f"s_cbranch_vccnz L_py_c{gi}")
        A(f"s_bitset1_b32 s79, {gi}")
        b0 = YL + 16 * gi
        for n in range(8):
            A(f"v_and_b32 v{b0+2*n}, 0xffffff00, v{b0+2*n}")
        for k in (0, 2):
            A(f"v_add_f32 v{b0+k}, v{b0+k}, v{b0+4+k}")
            A(f"v_add_f32 v{b0+8+k}, v{b0+8+k}, v{b0+12+k}")
        for k in (0, 2):
            A(f"v_add_f32 v{b0+k}, v{b0+k}, v{b0+8+k}")
        A.label(f"L_py_c{gi}", pad=False)
    A("s_cmp_eq_u32 s79, 3")
    A("s_cbranch_scc1 L_py_ok")
    A("v_cmp_eq_u32 s[64:65], v204, v4")
    A("s_cmp_lg_u32 s66, 0")
    A("s_cbranch_scc1 L_py_fast")
    A("s_cmp_eq_u32 s64, -1")
    A("s_cselect_b32 s66, 1, 0")
    A("s_cmp_eq_u32 s65, -1")
    A("s_cselect_b32 s67, 2, 0")
    A("s_or_b32 s66, s66, s67")
    A("s_cmp_lg_u32 s66, s79")
    A("s_cbranch_scc1 L_py_go")
    A(f"s_sleep {hsleep}")
    A.label("L_py_fast", pad=False)
    if ysleep:
        A(f"s_sleep {ysleep}")
    A("s_branch L_py_nd")
    A.label("L_py_go", pad=False)
    if ydelay:
        A(f"s_sleep {ydelay}")
    A.label("L_py_nd", pad=False)
    A("s_sub_u32 s57, s57, 1")
    A("s_cbranch_scc0 L_py")
    A.label("L_py_ok", pad=False)
    r0, r1 = YL, YL + 1
    A(f"v_add_f32 v{r0}, v{YL}, v{YL+16}")
    A(f"v_add_f32 v{r1}, v{YL+2}, v{YL+18}")
    allreduce("v_add_f32", [r0, r1], [YL + 4, YL + 5], (8, 16, 32))
    A(f"ds_write_b64 v167, v[{r0}:{r1}] offset:{RED}")
    A("s_waitcnt lgkmcnt(0)")
    A("s_barrier")
    A("s_cmp_lg_u32 s3, 0")
    A("s_cbranch_scc1 L_h_done")
    for w in range(1, 4):
        A(f"ds_read_b64 v[{YL+2*w}:{YL+2*w+1}], v167 offset:{RED+64*w}")
    A("s_waitcnt lgkmcnt(0)")
    for k in range(2):
        A(f"v_add_f32 v{YL+k}, v{YL+k}, v{YL+2+k}")
        A(f"v_add_f32 v{YL+4+k}, v{YL+4+k}, v{YL+6+k}")
    for k in range(2):
        A(f"v_add_f32 v{YL+k}, v{YL+k}, v{YL+4+k}")
    A(f"v_cvt_pk_bf16_f32 v10, v{r0}, v{r1}")
    A("s_mov_b64 exec, 0xff")
    A("buffer_store_dword v10, v165, s[52:55], s78 offen")
    A("s_cmp_lg_u32 s2, 0")
    A("s_cbranch_scc1 L_h_done")
    A("s_mov_b64 exec, 1")
    A(f"buffer_store_dword v4, v7, s[44:47], 0 offen offset:{EPOCH} sc1")
    if hstop:
        A("s_branch L_h_done")
        A.label("L_h_stop")
        A("s_barrier")
    A.label("L_h_done", pad=False)
    if stamps:
        A("s_mov_b64 exec, -1")
        A("s_waitcnt vmcnt(0)")
        stamp(7)
        stamp_out("s3")
    A("s_endpgm")

    A.raw(".p2align 6")
    A.label("L_stream", pad=False)
    A("s_sub_u32 s3, s3, 4")
    if sprio:
        A(f"s_setprio {sprio}")
    A("s_lshl_b32 s56, s33, 2")
    A("s_add_u32 s56, s56, s32")
    A("s_lshl_b32 s56, s56, 19")
    A("s_lshl_b32 s57, s3, 12")
    A("v_lshlrev_b32 v4, 4, v1")
    A("v_add_u32 v1, s57, v4")
    A("s_mov_b32 s42, 0x80000")
    if rot == 1:
        A("s_lshr_b32 s39, s2, 3")
    elif rot == 2:
        A("s_lshr_b32 s39, s2, 3")
        A("s_lshl_b32 s62, s34, 2")
        A("s_add_u32 s39, s39, s62")
    elif rot == 3:
        A("s_lshl_b32 s39, s34, 2")
    elif rot == 4:
        A("s_mul_i32 s39, s2, 0x9E3779B1")
        A("s_lshr_b32 s39, s39, 27")
    if rot:
        A("s_and_b32 s39, s39, 31")
        A("s_lshl_b32 s39, s39, 14")
    A("s_waitcnt lgkmcnt(0)")
    A("s_add_u32 s40, s6, s56")
    A("s_addc_u32 s41, s7, 0")
    A("s_add_u32 s48, s8, s56")
    A("s_addc_u32 s49, s9, 0")
    RING, SC, AO = 64, 8, 16

    def issue(pc, sreg):
        for t in range(4):
            r = RING + 16 * pc + 4 * t
            A(f"buffer_load_dwordx4 v[{r}:{r+3}], v1, s[40:43], {sreg} offen offset:{1024*t} {pol}")

    for pc in range(8):
        if pc == early:
            A("s_barrier")
        if 4 * pc >= P:
            A(f"s_waitcnt vmcnt({P-4})")
        if rot:
            A(f"s_add_u32 s58, s39, {16384*pc}")
            A("s_and_b32 s58, s58, 0x7ffff")
        else:
            A(f"s_mov_b32 s58, {16384*pc}")
        issue(pc, "s58")
    PARK = 192
    A("s_mov_b32 s50, 0x80000")
    for pk in range(park):
        A(f"s_waitcnt vmcnt({P-4})")
        if rot:
            A(f"s_add_u32 s58, s39, {16384*(32-park+pk)}")
            A("s_and_b32 s58, s58, 0x7ffff")
        else:
            A(f"s_mov_b32 s58, {16384*(32-park+pk)}")
        for t in range(4):
            r = PARK + 16 * pk + 4 * t
            A(f"buffer_load_dwordx4 v[{r}:{r+3}], v1, s[48:51], s58 offen offset:{1024*t} {pol}")
    A("s_mov_b32 s44, s28")
    A("s_mov_b32 s45, s29")
    A("v_and_b32 v4, 2, v0")
    A("v_cmp_ne_u32 s[80:81], 0, v4")
    A("v_and_b32 v4, 1, v0")
    A("v_cmp_ne_u32 s[82:83], 0, v4")
    for r in range(8):
        A(f"v_mov_b32 v{AO+r}, 0")
    A("v_lshrrev_b32 v40, 1, v2")
    A("v_lshlrev_b32 v40, 12, v40")
    A("v_and_b32 v41, 1, v2")
    A("v_lshl_add_u32 v41, v41, 2, v3")
    A("v_lshl_add_u32 v40, v41, 4, v40")
    A("s_lshl_b32 s61, s30, 15")
    A("s_lshl_b32 s56, s38, 9")
    A("s_add_u32 s61, s61, s56")
    A("s_lshl_b32 s56, s3, 7")
    A("s_add_u32 s61, s61, s56")
    A(f"s_add_u32 s61, s61, {REC}")
    A("s_lshl_b32 s56, s3, 3")
    A("v_mov_b32 v41, s56")
    A("v_lshlrev_b32 v24, 4, v2")
    A("v_mov_b32 v25, 0")
    if not (noq or noh or hstop):
        lds_poll("L_ps", [f"ds_read_b64 v[44:45], v25 offset:{QF}"], 44, 1)
    A(f"ds_read_b128 v[4:7], v24 offset:{Q_LDS}")
    stamp(1)
    A("v_mov_b32 v47, v45")
    A("s_mov_b32 s59, 0")
    if rot:
        A(f"s_add_u32 s60, s39, {8*16384}")
    else:
        A(f"s_mov_b32 s60, {8*16384}")
    A("s_waitcnt lgkmcnt(0)")

    def pace_issue(pc):
        if P <= 28:
            A(f"s_waitcnt vmcnt({P-4})")
        A(f"s_add_u32 s58, s60, {16384*pc}")
        if rot:
            A("s_and_b32 s58, s58, 0x7ffff")
        issue(pc, "s58")

    A.raw(".p2align 6")
    A.label("L_kloop")
    A("s_cmp_eq_u32 s59, 3")
    A("s_cselect_b32 s40, s48, s40")
    A("s_cselect_b32 s41, s49, s41")
    A(f"s_cselect_b32 s60, {'s39' if rot else '0'}, s60")
    for r in range(6):
        A(f"v_mov_b32 v{SC+r}, v{SC+r+2}")
    BR, CR = 32, 36
    for pc in range(8):
        a = 24 + 4 * (pc & 1)
        if P > 28:
            A("s_waitcnt vmcnt(28)")
        for d in range(4):
            for t in range(4):
                r = RING + 16 * pc + 4 * t + d
                if d == 0:
                    A(f"v_dot2_f32_bf16 v{a+t}, v{r}, v{4+d}, 0")
                else:
                    A(f"v_dot2c_f32_bf16 v{a+t}, v{r}, v{4+d}")
        pace_issue(pc)
        A(f"v_add_f32_dpp v{a}, v{a}, v{a} row_ror:8 row_mask:0xf bank_mask:0x3")
        A(f"v_add_f32_dpp v{a+2}, v{a+2}, v{a+2} row_ror:8 row_mask:0xf bank_mask:0x3")
        A(f"v_add_f32_dpp v{a}, v{a+1}, v{a+1} row_ror:8 row_mask:0xf bank_mask:0xc")
        A(f"v_add_f32_dpp v{a+2}, v{a+3}, v{a+3} row_ror:8 row_mask:0xf bank_mask:0xc")
        bq = BR + (pc & 1)
        A(f"v_add_f32_dpp v{bq}, v{a}, v{a} row_shl:4 row_mask:0xf bank_mask:0x5")
        A(f"v_add_f32_dpp v{bq}, v{a+2}, v{a+2} row_shr:4 row_mask:0xf bank_mask:0xa")
        if pc & 1:
            cq = CR + ((pc >> 1) & 1)
            A(f"v_cndmask_b32 v34, v{BR+1}, v{BR}, s[80:81]")
            A(f"v_cndmask_b32 v35, v{BR}, v{BR+1}, s[80:81]")
            A(f"v_add_f32_dpp v{cq}, v34, v35 quad_perm:[2,3,0,1] {DPP}")
        if (pc & 3) == 3:
            A(f"v_cndmask_b32 v34, v{CR+1}, v{CR}, s[82:83]")
            A(f"v_cndmask_b32 v35, v{CR}, v{CR+1}, s[82:83]")
            A(f"v_add_f32_dpp v{SC+6+(pc>>2)}, v34, v35 quad_perm:[1,0,3,2] {DPP}")
    A(f"s_add_u32 s60, s60, {8*16384}")
    A("s_add_u32 s59, s59, 1")
    if stamps:
        A("s_cmp_lg_u32 s59, 1")
        A("s_cbranch_scc1 L_st4")
        stamp(4)
        A.label("L_st4", pad=False)
    A("s_cmp_lt_u32 s59, 4")
    A("s_cbranch_scc1 L_kloop")
    stamp(2)
    A(f"s_mov_b32 s56, 0x{SCALE:08x}")
    A(f"s_mov_b32 s57, 0x{LOG2E:08x}")
    for rnd in range(2):
        for n in range(0, 8, 2):
            A(f"v_cvt_pk_bf16_f32 v{24+n}, v{SC+n}, v{SC+n+1}")
        for n in range(0, 8, 2):
            A(f"v_lshlrev_b32 v{SC+n}, 16, v{24+n}")
            A(f"v_and_b32 v{SC+n+1}, 0xffff0000, v{24+n}")
        if rnd == 0:
            for n in range(8):
                A(f"v_mul_f32 v{SC+n}, s56, v{SC+n}")
    A(f"v_max3_f32 v32, v{SC}, v{SC+1}, v{SC+2}")
    A(f"v_max3_f32 v33, v{SC+3}, v{SC+4}, v{SC+5}")
    A(f"v_max3_f32 v32, v32, v{SC+6}, v{SC+7}")
    A("v_max_f32 v32, v32, v33")
    allreduce("v_max_f32", [32], [33], (1, 2, 4, 8, 16, 32))
    for n in range(8):
        A(f"v_sub_f32 v{SC+n}, v{SC+n}, v32")
    for n in range(8):
        A(f"v_mul_f32 v{SC+n}, s57, v{SC+n}")
    for n in range(8):
        A(f"v_exp_f32 v{SC+n}, v{SC+n}")
    for n in range(0, 8, 2):
        A(f"v_add_f32 v{24+n}, v{SC+n}, v{SC+n+1}")
    A("v_add_f32 v24, v24, v26")
    A("v_add_f32 v28, v28, v30")
    A("v_add_f32 v33, v24, v28")
    for n in range(8):
        A(f"v_mov_b32_dpp v{24+n}, v{SC+n} row_ror:8 {DPP}")
    for n in range(8):
        A(f"v_cvt_pk_bf16_f32 v{SC+n}, v{SC+n}, v{24+n}")
    allreduce("v_add_f32", [33], [36], (1, 2, 8, 4, 16, 32))
    A("v_mov_b32 v34, 1")
    A("v_mov_b32 v35, 0")
    A("s_lshl_b32 s56, s3, 4")
    A("v_mov_b32 v36, s56")
    A("s_mov_b64 exec, 1")
    A(f"ds_write_b128 v36, v[32:35] offset:{MLL}")
    A("s_mov_b64 exec, -1")
    A("s_mov_b32 s59, 0")

    def vbody(last):
        order = list(range(8))
        if last:
            order = order[8-park:] + order[:8-park]
        for pc in order:
            base = RING + 16 * pc
            if last and pc >= 8 - park:
                base = PARK + 16 * (pc - (8 - park))
            elif last:
                A(f"s_waitcnt vmcnt({4*(7-park-pc)})")
            elif P > 28:
                A("s_waitcnt vmcnt(28)")
            for pr in range(2):
                t0 = 24 + 8 * pr
                ra = base + 8 * pr
                rb = ra + 4
                for q in range(4):
                    A(f"v_perm_b32 v{t0+2*q}, v{rb+q}, v{ra+q}, s35")
                    A(f"v_perm_b32 v{t0+2*q+1}, v{rb+q}, v{ra+q}, s36")
            if not last:
                if pc >= 8 - park:
                    A("s_cmp_eq_u32 s59, 2")
                    A(f"s_cbranch_scc1 L_vskip{pc}")
                pace_issue(pc)
                if pc >= 8 - park:
                    A.label(f"L_vskip{pc}", pad=False)
            for pr in range(2):
                t0 = 24 + 8 * pr
                lane = bitrev4(4 * (pc & 3) + 2 * pr)
                for n in range(8):
                    A(f"v_dot2c_f32_bf16_dpp v{AO+n}, v{SC+(pc>>2)}, v{t0+n} row_newbcast:{lane} {DPP}")

    A.raw(".p2align 6")
    A.label("L_vloop")
    vbody(False)
    for r in range(6):
        A(f"v_mov_b32 v{SC+r}, v{SC+r+2}")
    A(f"s_add_u32 s60, s60, {8*16384}")
    A("s_add_u32 s59, s59, 1")
    if stamps:
        A("s_cmp_lg_u32 s59, 1")
        A("s_cbranch_scc1 L_st5")
        stamp(5)
        A.label("L_st5", pad=False)
    A("s_cmp_lt_u32 s59, 3")
    A("s_cbranch_scc1 L_vloop")
    stamp(6)
    if not (noh or hstop):
        lds_poll("L_pc2", [f"ds_read_b64 v[42:43], v41 offset:{SCL}"], 43, 1)
    if noq:
        A("v_mov_b32 v25, 0")
        lds_poll("L_ps", [f"ds_read_b64 v[44:45], v25 offset:{QF}"], 44, 1)
        A("v_mov_b32 v47, v45")
    vbody(True)
    for c in range(4):
        A(f"v_permlane32_swap_b32 v{AO+c}, v{AO+c+4}")
    for c in range(4):
        A(f"v_add_f32 v{AO+c}, v{AO+c}, v{AO+c+4}")
    for c in range(2):
        A(f"v_permlane16_swap_b32 v{AO+c}, v{AO+c+2}")
    for c in range(2):
        A(f"v_add_f32 v{AO+c}, v{AO+c}, v{AO+c+2}")
    A(f"v_mul_f32 v44, v{AO}, v42")
    A(f"v_mul_f32 v46, v{AO+1}, v42")
    A("v_bfi_b32 v44, s37, v45, v44")
    A("v_bfi_b32 v46, s37, v45, v46")
    A("buffer_store_dwordx4 v[44:47], v40, s[44:47], s61 offen sc1")
    stamp(3)
    A("s_barrier")
    if stamps:
        stamp(7)
        A("s_add_u32 s3, s3, 4")
        stamp_out("s3")
    A.label("L_end", pad=False)
    A("s_endpgm")
    A.raw("L_code_end:")
    A.raw('.section .rodata,"a"')
    A.raw(".p2align 6")
    A.raw(f".amdhsa_kernel {NAME}_kernel")
    A.raw("  .amdhsa_next_free_vgpr 256")
    A.raw("  .amdhsa_next_free_sgpr 102")
    A.raw("  .amdhsa_accum_offset 256")
    A.raw("  .amdhsa_group_segment_fixed_size 0")
    A.raw("  .amdhsa_kernarg_size 104")
    A.raw("  .amdhsa_user_sgpr_count 2")
    A.raw("  .amdhsa_user_sgpr_kernarg_segment_ptr 1")
    A.raw("  .amdhsa_system_sgpr_workgroup_id_x 1")
    A.raw("  .amdhsa_float_denorm_mode_32 3")
    A.raw("  .amdhsa_float_denorm_mode_16_64 3")
    A.raw(".end_amdhsa_kernel")
    return A


if __name__ == "__main__":
    out = sys.argv[1]
    kw = {}
    for a in sys.argv[2:]:
        for kv in a.split(","):
            k, v = kv.split("=")
            kw[k] = int(v) if v.lstrip("-").isdigit() else ("" if v == "none" else v)
    A = gen(**kw)
    open(out, "w").write(A.text())
    print(out, "instructions:", A.ninstr)
```

```python
import sys
from asmlib import Asm

NAME = "gated_mix__gqa_block_cached__geglu_ffn__decode"

EPOCH = 0
QP = 0x10000
FP = 0x60000
ML = 0xA0000
HINT = 0xB0000
REC = 0x100000
YB = 0x200000
WS_BYTES = 0x480000
Q_LDS, OL, RED, MLL, QF, GF, SCL, LDS_BYTES = 0, 256, 512, 1024, 1088, 1104, 1120, 2048
SPIN = 60000
LOG2E = 0x3FB8AA3B
SCALE = 0x3DB504F3
DPP = "row_mask:0xf bank_mask:0xf"


def bitrev4(t):
    return ((t & 1) << 3) | ((t & 2) << 1) | ((t & 4) >> 1) | ((t & 8) >> 3)


def gen(P=6, stamps=0, pol="nt", wpol="nt", sleep=1, prefetch=1, hprio=1, early=0, sprio=0, ysleep=1,
        rsleep=3, hsleep=6, noh=0, hstop=0, rpipe=1, P0=None, PF=16, fast_it=3, psleep=4, gate=-1, row=1, ypipe=1):
    park = 0
    rot = 0
    noq = 0
    P0 = P0 or P
    A = Asm()
    hdr = open("cdna_kernels/%s.s.ref" % NAME).read().split("; Override")[0]
    A.raw(hdr.rstrip())
    A.raw(f"; @launch grid=(256,1,1) block=(512,1,1) lds={LDS_BYTES}")
    A.raw('.amdgcn_target "amdgcn-amd-amdhsa--gfx950"')
    A.raw(".text")
    A.raw(f".globl {NAME}_kernel")
    A.raw(".p2align 8")
    A.raw(f".type {NAME}_kernel,@function")
    A.raw(f"{NAME}_kernel:")

    def stamp(k):
        if stamps:
            A(f"s_memrealtime s[{84+2*k}:{85+2*k}]")

    def stamp_out(role_sreg):
        if not stamps:
            return
        A("s_waitcnt lgkmcnt(0)")
        A("s_lshl_b32 s56, s2, 9")
        A(f"s_lshl_b32 s57, {role_sreg}, 6")
        A("s_add_u32 s56, s56, s57")
        A("s_add_u32 s56, s56, 0x10000000")
        A("s_add_u32 s52, s28, s56")
        A("s_addc_u32 s53, s29, 0")
        A("s_mov_b32 s54, 64")
        A("s_mov_b32 s55, 0x20000")
        A("v_mov_b32 v2, 0")
        A("s_mov_b64 exec, 1")
        for k in range(8):
            A(f"v_mov_b32 v16, s{84+2*k}")
            A(f"v_mov_b32 v17, s{85+2*k}")
            A(f"buffer_store_dwordx2 v[16:17], v2, s[52:55], 0 offen offset:{8*k}")
            A("s_nop 1")
        A("s_mov_b64 exec, -1")

    def check(regs, bad, tmp, T="v4"):
        for n, r in enumerate(regs):
            A(f"v_bitop3_b32 v{tmp}, v{r}, v{r+2}, {T} bitop3:0x7e")
            A(f"v_bitop3_b32 v{tmp+1}, v{r+1}, v{r+3}, {T} bitop3:0x7e")
            if n == 0:
                A(f"v_and_or_b32 v{bad}, v{tmp}, s37, v{tmp+1}")
            else:
                A(f"v_and_or_b32 v{tmp}, v{tmp}, s37, v{tmp+1}")
                A(f"v_or_b32 v{bad}, v{bad}, v{tmp}")

    def poll(lbl, regs, voff, soff, imm, bad, tmp, slp=sleep):
        A(f"s_mov_b32 s57, {SPIN}")
        A.label(lbl)
        for n, r in enumerate(regs):
            A(f"buffer_load_dwordx4 v[{r}:{r+3}], {voff}, s[44:47], {soff} offen offset:{imm[n]} sc1")
        A("s_waitcnt vmcnt(0)")
        check(regs, bad, tmp)
        A(f"v_cmp_ne_u32 vcc, 0, v{bad}")
        A(f"s_cbranch_vccz {lbl}_ok")
        if slp:
            A(f"s_sleep {slp}")
        A("s_sub_u32 s57, s57, 1")
        A(f"s_cbranch_scc0 {lbl}")
        A.label(lbl + "_ok", pad=False)

    def lds_poll(lbl, rd, flagreg, slp):
        A(f"s_mov_b32 s57, {SPIN*16}")
        A.label(lbl)
        for r in rd:
            A(r)
        A("s_waitcnt lgkmcnt(0)")
        A(f"v_cmp_ne_u32 vcc, 1, v{flagreg}")
        A(f"s_cbranch_vccz {lbl}_ok")
        A(f"s_sleep {slp}")
        A("s_sub_u32 s57, s57, 1")
        A(f"s_cbranch_scc0 {lbl}")
        A.label(lbl + "_ok", pad=False)

    def allreduce(op, regs, tmps, levels):
        ctrl = {1: "quad_perm:[1,0,3,2]", 2: "quad_perm:[2,3,0,1]", 4: "row_ror:4", 8: "row_ror:8", "hm": "row_half_mirror"}
        for lv in levels:
            if lv in ctrl:
                for r in regs:
                    A(f"{op}_dpp v{r}, v{r}, v{r} {ctrl[lv]} {DPP}")
            else:
                for r, t in zip(regs, tmps):
                    A(f"v_mov_b32 v{t}, v{r}")
                for r, t in zip(regs, tmps):
                    A(f"v_permlane{lv}_swap_b32 v{r}, v{t}")
                for r, t in zip(regs, tmps):
                    A(f"{op} v{r}, v{r}, v{t}")

    def round_pair(a, b, t):
        A(f"v_cvt_pk_bf16_f32 v{t}, v{a}, v{b}")
        A(f"v_lshlrev_b32 v{a}, 16, v{t}")
        A(f"v_and_b32 v{b}, 0xffff0000, v{t}")

    def red_setup(wave, lane, T):
        A(f"v_lshrrev_b32 v200, 3, {lane}")
        A("v_mul_u32_u24 v200, 10240, v200")
        A(f"v_and_b32 v201, 7, {lane}")
        A("v_lshl_add_u32 v200, v201, 4, v200")
        A("s_lshl_b32 s76, s2, 7")
        A(f"s_mul_i32 s56, {wave}, {32*10240}")
        A("s_add_u32 s76, s76, s56")
        A(f"s_add_u32 s76, s76, {YB}")
        for i in range(1, 4):
            A(f"s_add_u32 s{72+i if False else 94+i}, s76, {8*10240*i}") if False else None
        A(f"s_lshl_b32 s56, {wave}, 6")
        A("v_lshl_add_u32 v201, v201, 3, s56")
        A(f"v_mov_b32 v202, {T}")

    A("s_cmp_ge_u32 s2, 256")
    A("s_cbranch_scc1 L_end")
    A("s_load_dwordx16 s[4:19], s[0:1], 0")
    A("s_load_dwordx8 s[20:27], s[0:1], 64")
    A("s_load_dwordx2 s[28:29], s[0:1], 96")
    stamp(0)
    if stamps:
        for k in range(1, 8):
            A(f"s_mov_b64 s[{84+2*k}:{85+2*k}], 0")
    A("v_lshrrev_b32 v1, 6, v0")
    A("v_and_b32 v2, 15, v0")
    A("v_readfirstlane_b32 s3, v1")
    A("v_and_b32 v1, 63, v0")
    A("v_lshrrev_b32 v3, 4, v1")
    A("s_and_b32 s34, s2, 7")
    A("s_lshr_b32 s56, s2, 6")
    A("s_lshl_b32 s56, s56, 3")
    A("s_add_u32 s30, s34, s56")
    A("s_lshr_b32 s38, s2, 3")
    A("s_and_b32 s38, s38, 7")
    A("s_and_b32 s32, s38, 3")
    A("s_lshr_b32 s31, s38, 2")
    A("s_lshl_b32 s33, s31, 5")
    A("s_add_u32 s33, s33, s30")
    A("s_mov_b32 s35, 0x05040100")
    A("s_mov_b32 s36, 0x07060302")
    A("s_movk_i32 s37, 0xff")
    A("s_mov_b32 s43, 0x20000")
    A("s_mov_b32 s47, 0x20000")
    A("s_mov_b32 s51, 0x20000")
    A("s_mov_b32 s55, 0x20000")
    A(f"s_mov_b32 s46, {WS_BYTES}")
    A("s_cmp_ge_u32 s3, 4")
    A("s_cbranch_scc1 L_stream")

    if noh:
        A("s_waitcnt lgkmcnt(0)")
        A("s_barrier")
        A("s_barrier")
        A("s_branch L_h_done")
    if hprio:
        A(f"s_setprio {hprio}")
    A("s_lshr_b32 s63, s2, 3")
    A("s_lshr_b32 s64, s2, 2")
    A("s_and_b32 s64, s64, 1")
    A("s_and_b32 s65, s2, 3")
    A("s_movk_i32 s56, 3456")
    A("s_lshl_b32 s57, s63, 7")
    A("s_movk_i32 s59, 512")
    A("s_movk_i32 s60, 256")
    A("s_movk_i32 s61, 64")
    A("s_movk_i32 s71, 16")
    A("s_lshl_b32 s62, s2, 10")
    A(f"s_add_u32 s62, s62, {FP}")
    A(f"s_mov_b32 s42, {640*3456}")
    A("s_cmp_lg_u32 s3, 0")
    A("s_cbranch_scc1 L_h_notq")
    A("s_movk_i32 s56, 8192")
    A("s_lshl_b32 s57, s30, 8")
    A("s_lshl_b32 s66, s31, 7")
    A("s_add_u32 s57, s57, s66")
    A(f"s_mov_b32 s59, {32*4096}")
    A("s_movk_i32 s60, 64")
    A("s_movk_i32 s61, 16")
    A("s_movk_i32 s71, 1024")
    A("s_lshl_b32 s62, s30, 12")
    A("s_add_u32 s62, s62, s66")
    A("s_lshl_b32 s66, s32, 8")
    A("s_add_u32 s62, s62, s66")
    A(f"s_add_u32 s62, s62, {QP}")
    A(f"s_mov_b32 s42, {640*8192}")
    A("s_mov_b32 s65, s32")
    A.label("L_h_notq", pad=False)
    A("s_mul_i32 s66, s65, 160")
    A("s_mul_i32 s66, s66, s56")
    A("s_add_u32 s57, s57, s66")
    A("s_mul_i32 s58, s65, 320")
    A("s_mul_i32 s67, s56, 25")
    A("v_lshlrev_b32 v5, 3, v3")
    A("v_mul_lo_u32 v5, v5, s56")
    A("v_lshl_add_u32 v5, v2, 3, v5")
    A("v_lshrrev_b32 v6, 3, v2")
    A("v_mul_u32_u24 v6, 1280, v6")
    A("v_lshl_add_u32 v6, v3, 4, v6")
    A("v_mov_b32 v7, 0")
    A("s_movk_i32 s50, 2560")
    A("s_cmp_eq_u32 s3, 0")
    A("s_cselect_b32 s66, 0, s2")
    A("s_cmp_ge_u32 s3, 2")
    A("s_cselect_b32 s66, 255, s66")
    A("s_waitcnt lgkmcnt(0)")
    A("s_mov_b32 s44, s28")
    A("s_mov_b32 s45, s29")
    A("s_mov_b32 s48, s4")
    A("s_mov_b32 s49, s5")
    A("s_cmp_eq_u32 s64, 0")
    A("s_cselect_b32 s40, s16, s18")
    A("s_cselect_b32 s41, s17, s19")
    A("s_cmp_eq_u32 s3, 0")
    A("s_cselect_b32 s40, s10, s40")
    A("s_cselect_b32 s41, s11, s41")
    A("s_cmp_ge_u32 s66, 216")
    A("s_cbranch_scc1 L_h_idle0")
    W0, X0, FR0, AC0 = 16, 96, 116, 132
    for ks in range(5):
        A(f"buffer_load_dwordx4 v[{X0+4*ks}:{X0+4*ks+3}], v6, s[48:51], s58 offen offset:{64*ks}")
        for e in range(8):
            r = W0 + 2 * (8 * ks + e)
            A(f"buffer_load_dwordx2 v[{r}:{r+1}], v5, s[40:43], s57 offen {wpol}")
            A(f"s_add_u32 s57, s57, {'s56' if e < 7 else 's67'}")
    A(f"buffer_load_dword v4, v7, s[44:47], 0 offen offset:{EPOCH} sc1")
    A("s_barrier")
    stamp(1)
    A("v_lshrrev_b32 v8, 1, v3")
    A("v_mul_lo_u32 v8, v8, s59")
    A("v_lshrrev_b32 v9, 3, v2")
    A("v_mul_lo_u32 v9, v9, s60")
    A("v_add_u32 v8, v8, v9")
    A("v_bfe_u32 v9, v2, 1, 2")
    A("v_mul_lo_u32 v9, v9, s61")
    A("v_add_u32 v8, v8, v9")
    A("v_and_b32 v9, 1, v2")
    A("v_lshlrev_b32 v9, 1, v9")
    A("v_and_b32 v10, 1, v3")
    A("v_add_u32 v9, v9, v10")
    A("v_mul_lo_u32 v9, v9, s71")
    A("v_add_u32 v8, v8, v9")
    A("v_cmp_eq_u32 s[68:69], 1, v10")
    for ks in range(5):
        A(f"s_waitcnt vmcnt({46-9*(ks+1)})")
        for c in range(4):
            for d in range(4):
                lo = W0 + 2 * (8 * ks + 2 * d) + (c >> 1)
                hi = W0 + 2 * (8 * ks + 2 * d + 1) + (c >> 1)
                A(f"v_perm_b32 v{FR0+4*c+d}, v{hi}, v{lo}, {'s36' if c & 1 else 's35'}")
        for c in range(4):
            cc = "0" if ks == 0 else f"v[{AC0+4*c}:{AC0+4*c+3}]"
            A(f"v_mfma_f32_16x16x32_bf16 v[{AC0+4*c}:{AC0+4*c+3}], v[{X0+4*ks}:{X0+4*ks+3}], v[{FR0+4*c}:{FR0+4*c+3}], {cc}")
    A("s_waitcnt vmcnt(0)")
    stamp(2)
    if hstop == 1:
        A("s_branch L_h_stop")
    A("v_add_u32 v4, 1, v4")
    A("v_mov_b32 v13, v4")
    A("v_mov_b32 v15, v4")
    A(f"v_cndmask_b32 v12, v{AC0}, v{AC0+8}, s[68:69]")
    A(f"v_cndmask_b32 v14, v{AC0+4}, v{AC0+12}, s[68:69]")
    A("v_bfi_b32 v12, s37, v4, v12")
    A("v_bfi_b32 v14, s37, v4, v14")
    A("buffer_store_dwordx4 v[12:15], v8, s[44:47], s62 offen sc1")
    stamp(3)
    if hstop == 2:
        A("s_branch L_h_stop")
    A("s_branch L_h_b")

    A.label("L_h_idle0", pad=False)
    A("s_cmp_lg_u32 s3, 3")
    A("s_cbranch_scc1 L_h_noinit")
    A("v_lshlrev_b32 v9, 3, v1")
    A("v_mov_b32 v10, 0")
    A("v_mov_b32 v11, 0")
    A(f"ds_write_b64 v9, v[10:11] offset:{MLL}")
    A("s_waitcnt lgkmcnt(0)")
    A.label("L_h_noinit", pad=False)
    A("s_barrier")
    if hstop in (1, 2):
        A("s_branch L_h_stop")
    if prefetch:
        A("s_cmp_lg_u32 s3, 3")
        A("s_cbranch_scc1 L_h_nopf")
        A("s_getpc_b64 s[52:53]")
        A.raw("L_pc:")
        A(f"s_sub_u32 s52, s52, L_pc-{NAME}_kernel")
        A("s_subb_u32 s53, s53, 0")
        A(f"s_mov_b32 s54, L_code_end-{NAME}_kernel")
        A("v_lshlrev_b32 v9, 12, v1")
        A("s_lshr_b32 s56, s2, 3")
        A("s_lshl_b32 s56, s56, 7")
        A("s_mov_b64 exec, 0xff")
        A("buffer_load_dword v200, v9, s[52:55], s56 offen")
        A("s_mov_b64 exec, -1")
        A.label("L_h_nopf", pad=False)
    A("s_cmp_lg_u32 s3, 2")
    A("s_cbranch_scc1 L_h_b")
    A("s_mov_b32 s52, s22")
    A("s_mov_b32 s53, s23")
    A("s_movk_i32 s54, 1280")
    A("v_and_b32 v9, 31, v1")
    A("v_lshlrev_b32 v9, 3, v9")
    A("v_lshrrev_b32 v10, 5, v1")
    A("v_mul_u32_u24 v11, 1280, v10")
    A("v_add_u32 v11, v11, v9")
    for t in range(5):
        A(f"buffer_load_dwordx2 v[{200+2*t}:{201+2*t}], v11, s[48:51], 0 offen offset:{256*t}")
        A(f"buffer_load_dwordx2 v[{210+2*t}:{211+2*t}], v9, s[52:55], 0 offen offset:{256*t}")
    A("v_mov_b32 v12, 0")
    A("s_waitcnt vmcnt(0)")
    for t in range(10):
        A(f"v_lshlrev_b32 v220, 16, v{200+t}")
        A(f"v_lshlrev_b32 v221, 16, v{210+t}")
        A(f"v_and_b32 v222, 0xffff0000, v{200+t}")
        A(f"v_and_b32 v223, 0xffff0000, v{210+t}")
        A("v_mul_f32 v220, v220, v221")
        A("v_mul_f32 v222, v222, v223")
        round_pair(220, 222, 224)
        A("v_add_f32 v12, v12, v220")
        A("v_add_f32 v12, v12, v222")
    allreduce("v_add_f32", [12], [220], (1, 2, 8, 4, 16))
    A("v_cvt_pk_bf16_f32 v12, v12, v12")
    A("v_and_b32 v12, 0xffff0000, v12")
    A(f"v_mul_f32 v12, 0x{LOG2E ^ 0x80000000:08x}, v12")
    A("v_exp_f32 v12, v12")
    A("v_add_f32 v12, 1.0, v12")
    A("v_rcp_f32 v12, v12")
    A("v_cvt_pk_bf16_f32 v12, v12, v12")
    A("v_and_b32 v12, 0xffff0000, v12")
    A("v_lshlrev_b32 v10, 2, v10")
    A(f"ds_write_b32 v10, v12 offset:{GF+4}")
    A("v_mov_b32 v11, 1")
    A("s_waitcnt lgkmcnt(0)")
    A(f"ds_write_b32 v7, v11 offset:{GF}")

    A.label("L_h_b")
    if hstop == 3:
        A("s_branch L_h_stop")
    A("s_lshl_b32 s56, s30, 3")
    A("s_add_u32 s72, s56, s38")
    A(f"s_mul_i32 s56, s72, {16*1280}")
    A("s_add_u32 s40, s12, s56")
    A("s_addc_u32 s41, s13, 0")
    A(f"s_mov_b32 s42, {16*1280}")
    A(f"s_mul_i32 s56, s2, {8*1280}")
    A("s_add_u32 s52, s20, s56")
    A("s_addc_u32 s53, s21, 0")
    A("s_cmp_lt_u32 s2, 216")
    A(f"s_cselect_b32 s54, {8*1280}, 0")
    A("s_cselect_b32 s52, s52, s20")
    A("s_cselect_b32 s53, s53, s21")
    A("s_lshl_b32 s56, s3, 8")
    A("s_lshl_b32 s58, s3, 6")
    A("s_add_u32 s58, s58, 1024")
    A("v_mul_u32_u24 v8, 5120, v3")
    A("v_lshl_add_u32 v5, v2, 4, v8")
    A("v_lshl_add_u32 v6, v2, 2, v8")
    A("v_mul_u32_u24 v8, 2560, v3")
    A("v_lshl_add_u32 v9, v2, 4, v8")
    A("v_lshl_add_u32 v10, v2, 2, v8")
    for e in range(4):
        A(f"buffer_load_dwordx4 v[{16+4*e}:{19+4*e}], v5, s[40:43], s56 offen offset:{1280*e} {wpol}")
        A(f"buffer_load_dword v{32+e}, v6, s[40:43], s58 offen offset:{1280*e} {wpol}")
    for e in range(2):
        A(f"buffer_load_dwordx4 v[{36+4*e}:{39+4*e}], v9, s[52:55], s56 offen offset:{1280*e} {wpol}")
        A(f"buffer_load_dword v{44+e}, v10, s[52:55], s58 offen offset:{1280*e} {wpol}")
    A("s_cmp_lg_u32 s3, 0")
    A("s_cbranch_scc1 L_h_noq")
    A("v_lshlrev_b32 v12, 4, v1")
    A("s_lshl_b32 s56, s33, 12")
    A(f"s_add_u32 s56, s56, {QP}")
    QL = 148
    poll("L_pq", [QL + 4 * i for i in range(4)], "v12", "s56", [1024 * i for i in range(4)], 10, 164)
    for n in range(8):
        A(f"v_and_b32 v{QL+2*n}, 0xffffff00, v{QL+2*n}")
    for n in range(4):
        A(f"v_permlane32_swap_b32 v{QL+2*n}, v{QL+2*(n+4)}")
    for n in range(4):
        A(f"v_add_f32 v{QL+2*n}, v{QL+2*n}, v{QL+2*(n+4)}")
    for n in range(2):
        A(f"v_permlane16_swap_b32 v{QL+2*n}, v{QL+2*(n+2)}")
    for n in range(2):
        A(f"v_add_f32 v{QL+2*n}, v{QL+2*n}, v{QL+2*(n+2)}")
    A(f"v_cvt_pk_bf16_f32 v10, v{QL}, v{QL+2}")
    A("v_lshlrev_b32 v9, 4, v2")
    A("v_lshl_add_u32 v9, v3, 2, v9")
    A(f"ds_write_b32 v9, v10 offset:{Q_LDS}")
    A("v_mov_b32 v10, 1")
    A("v_mov_b32 v11, v4")
    A("s_waitcnt lgkmcnt(0)")
    A(f"ds_write_b64 v7, v[10:11] offset:{QF}")
    stamp(6)
    A.label("L_h_noq", pad=False)

    FO, FD = 48, 68
    lds_poll("L_pt", [f"ds_read_b64 v[10:11], v7 offset:{QF}"], 10, 2)
    A("v_mov_b32 v4, v11")
    A("v_lshrrev_b32 v9, 5, v1")
    A("v_lshlrev_b32 v9, 2, v9")
    lds_poll("L_pg", [f"ds_read_b32 v10, v7 offset:{GF}", f"ds_read_b32 v78, v9 offset:{GF+4}"], 10, 2)
    A("v_sub_f32 v79, 1.0, v78")
    A("v_cvt_pk_bf16_f32 v79, v79, v79")
    A("v_and_b32 v79, 0xffff0000, v79")
    A("s_waitcnt vmcnt(0)")
    for c in range(8):
        for d in range(2):
            A(f"v_perm_b32 v{FO+2*c+d}, v{16+4*(2*d+1)+(c>>1)}, v{16+4*(2*d)+(c>>1)}, {'s36' if c & 1 else 's35'}")
        A(f"v_perm_b32 v{FD+c}, v{40+(c>>1)}, v{36+(c>>1)}, {'s36' if c & 1 else 's35'}")
    for cc in range(2):
        for d in range(2):
            A(f"v_perm_b32 v{FO+16+2*cc+d}, v{32+2*d+1}, v{32+2*d}, {'s36' if cc else 's35'}")
        A(f"v_perm_b32 v{FD+8+cc}, v45, v44, {'s36' if cc else 's35'}")
    Z = 140
    if hstop == 4:
        A("s_branch L_h_stop")
    for k in range(6):
        A(f"v_mov_b32 v{Z+k}, 0")
    A("v_and_b32 v10, 1, v3")
    A("v_cmp_eq_u32 s[68:69], 1, v10")
    A("s_cmp_ge_u32 s2, 216")
    A("s_cbranch_scc1 L_h_nof2")
    A("v_and_b32 v9, 7, v2")
    A("v_lshlrev_b32 v9, 10, v9")
    A("v_lshrrev_b32 v10, 3, v2")
    A("v_lshl_add_u32 v9, v10, 9, v9")
    A("v_lshl_add_u32 v9, v3, 4, v9")
    A("s_lshr_b32 s56, s2, 3")
    A("s_lshl_b32 s56, s56, 13")
    A("s_lshl_b32 s58, s34, 6")
    A("s_add_u32 s56, s56, s58")
    A(f"s_add_u32 s56, s56, {FP}")
    poll("L_pf", [80], "v9", "s56", [0], 10, 84, slp=4)
    val, tmp, U = [80, 82], [81, 83], [84, 85]
    for r in val:
        A(f"v_and_b32 v{r}, 0xffffff00, v{r}")
    allreduce("v_add_f32", val, None, (1, 2))
    round_pair(80, 82, 81)
    A("s_mov_b32 s56, 0x3d372713")
    A("s_mov_b32 s57, 0xc0135761")
    for n in range(2):
        A(f"v_mov_b32_dpp v{U[n]}, v{val[n]} row_shl:4 {DPP} bound_ctrl:0")
    for n in range(2):
        A(f"v_mul_f32 v{tmp[n]}, v{val[n]}, v{val[n]}")
    for n in range(2):
        A(f"v_mul_f32 v{tmp[n]}, v{tmp[n]}, v{val[n]}")
    for n in range(2):
        A(f"v_fma_f32 v{tmp[n]}, v{tmp[n]}, s56, v{val[n]}")
    for n in range(2):
        A(f"v_mul_f32 v{tmp[n]}, s57, v{tmp[n]}")
    for n in range(2):
        A(f"v_exp_f32 v{tmp[n]}, v{tmp[n]}")
    for n in range(2):
        A(f"v_add_f32 v{tmp[n]}, 1.0, v{tmp[n]}")
    for n in range(2):
        A(f"v_rcp_f32 v{tmp[n]}, v{tmp[n]}")
    for n in range(2):
        A(f"v_mul_f32 v{val[n]}, v{val[n]}, v{tmp[n]}")
    round_pair(80, 82, 81)
    for n in range(2):
        A(f"v_mul_f32 v{val[n]}, v{val[n]}, v{U[n]}")
    A("v_cvt_pk_bf16_f32 v96, v80, v82")
    A("v_mov_b32 v97, 0")
    A("v_mov_b32 v98, 0")
    A("v_mov_b32_dpp v96, v96 row_shr:4 row_mask:0xf bank_mask:0xa")
    A("v_mov_b32 v99, v96")
    for c in range(10):
        a = "v[98:99]" if c & 1 else "v[96:97]"
        f = FD + (c & ~1)
        A(f"v_mfma_f32_16x16x16_bf16 v[{100+4*c}:{103+4*c}], {a}, v[{f}:{f+1}], 0")
    for c in range(4):
        A(f"v_cndmask_b32 v{Z+c}, v{100+4*c}, v{100+4*(c+4)}, s[68:69]")
    for c in range(4):
        A(f"v_mul_f32 v{Z+c}, v{Z+c}, v79")
    A(f"v_mul_f32 v{Z+4}, v132, v79")
    A(f"v_mul_f32 v{Z+5}, v136, v79")
    A.label("L_h_nof2")
    if stamps:
        A("s_cmp_eq_u32 s3, 0")
        A("s_cbranch_scc1 L_st6")
        stamp(6)
        A.label("L_st6", pad=False)
    if hstop == 5:
        A("s_branch L_h_stop")
    A("s_cmp_lg_u32 s3, 0")
    A("s_cbranch_scc1 L_h_noml")
    A("v_and_b32 v8, 3, v1")
    A("v_lshlrev_b32 v8, 4, v8")
    lds_poll("L_pl", [f"ds_read_b128 v[150:153], v8 offset:{MLL}"], 152, 4)
    A(f"s_mov_b32 s58, 0x{LOG2E:08x}")

    def stats(mr, lr, M, Lr, t):
        A(f"v_mov_b32 v{M}, v{mr}")
        allreduce("v_max_f32", [M], None, (1, 2))
        A(f"v_sub_f32 v{t}, v{mr}, v{M}")
        A(f"v_mul_f32 v{t}, s58, v{t}")
        A(f"v_exp_f32 v{t}, v{t}")
        A(f"v_mul_f32 v{Lr}, v{lr}, v{t}")
        allreduce("v_add_f32", [Lr], None, (1, 2))

    stats(150, 151, 154, 156, 158)
    A("v_add_u32 v156, 0x80, v156")
    A("v_bfi_b32 v154, s37, v4, v154")
    A("v_bfi_b32 v156, s37, v4, v156")
    A("v_mov_b32 v155, v4")
    A("v_mov_b32 v157, v4")
    A("s_lshl_b32 s56, s33, 9")
    A(f"s_add_u32 s56, s56, {ML}")
    A("s_lshl_b32 s59, s32, 7")
    A("v_mov_b32 v9, s59")
    A("v_lshlrev_b32 v11, 3, v8")
    A("s_mov_b64 exec, 1")
    A("buffer_store_dwordx4 v[154:157], v9, s[44:47], s56 offen sc1")
    A("s_mov_b64 exec, -1")
    if gate >= 0 and row:
        A("v_and_b32 v12, 7, v1")
        A("v_lshlrev_b32 v12, 9, v12")
        A("s_andn2_b32 s59, s56, 0xe00")
        A("s_lshl_b32 s63, s32, 7")
        A("s_add_u32 s59, s59, s63")
        A(f"s_mov_b32 s57, {SPIN}")
        A.label("L_pm")
        A("buffer_load_dwordx4 v[158:161], v11, s[44:47], s56 offen sc1")
        A("buffer_load_dwordx4 v[168:171], v12, s[44:47], s59 offen sc1")
        A("s_waitcnt vmcnt(0)")
        check([158, 168], 10, 162)
        A("v_cmp_ne_u32 vcc, 0, v10")
        A("s_cbranch_vccz L_pm_ok")
        A("s_sleep 4")
        A("s_sub_u32 s57, s57, 1")
        A("s_cbranch_scc0 L_pm")
        A.label("L_pm_ok", pad=False)
    else:
        poll("L_pm", [158], "v11", "s56", [0], 10, 162, slp=8)
    A("v_and_b32 v158, 0xffffff00, v158")
    A("v_and_b32 v160, 0xffffff00, v160")
    stats(158, 160, 159, 161, 162)
    A("v_rcp_f32 v161, v161")
    A("v_sub_f32 v162, v150, v159")
    A("v_mul_f32 v162, s58, v162")
    A("v_exp_f32 v162, v162")
    A("v_mov_b32 v163, 1")
    A("v_mul_f32 v162, v162, v161")
    A("v_lshrrev_b32 v8, 1, v8")
    A(f"ds_write_b64 v8, v[162:163] offset:{SCL}")
    A.label("L_h_noml")
    if hstop == 6:
        A("s_branch L_h_stop")
    A("s_lshl_b32 s73, s72, 12")
    A("s_lshl_b32 s56, s3, 10")
    A("s_add_u32 s73, s73, s56")
    A(f"s_add_u32 s73, s73, {REC}")
    A("v_and_b32 v8, 7, v1")
    A("s_lshl_b32 s56, s3, 6")
    A("v_lshl_add_u32 v146, v8, 3, s56")
    A("v_lshrrev_b32 v8, 3, v2")
    A("v_lshlrev_b32 v8, 7, v8")
    A("v_lshl_add_u32 v164, v3, 4, v8")
    A("v_lshlrev_b32 v147, 4, v1")
    A("v_lshrrev_b32 v8, 1, v3")
    A("v_lshlrev_b32 v8, 8, v8")
    A("v_lshl_add_u32 v148, v2, 4, v8")
    A("s_lshl_b32 s56, s34, 5")
    A("s_lshr_b32 s57, s2, 3")
    A("s_add_u32 s56, s56, s57")
    A("s_mul_i32 s56, s56, 10240")
    A("s_mul_i32 s57, s3, 2560")
    A("s_add_u32 s56, s56, s57")
    A(f"s_add_u32 s74, s56, {YB}")
    A("v_and_b32 v10, 4, v2")
    A("v_cmp_eq_u32 s[70:71], 0, v10")
    for r in (9, 11, 13, 15, 37, 39):
        A(f"v_mov_b32 v{r}, v4")
    red_setup("s3", "v1", "v4")
    A("s_mul_i32 s56, s2, 205")
    A("s_lshr_b32 s56, s56, 12")
    A("s_mul_i32 s57, s56, 20")
    A("s_sub_u32 s57, s2, s57")
    A("s_bfe_u32 s58, s57, 0x10002")
    A("s_mul_i32 s58, s58, 1280")
    A("s_lshl_b32 s59, s56, 8")
    A("s_add_u32 s58, s58, s59")
    A("s_and_b32 s59, s57, 1")
    A("s_lshl_b32 s59, s59, 7")
    A("s_add_u32 s58, s58, s59")
    A("s_bfe_u32 s59, s57, 0x10001")
    A("s_lshl_b32 s59, s59, 3")
    A("s_add_u32 s58, s58, s59")
    A("s_bfe_u32 s59, s57, 0x10003")
    A("s_lshl_b32 s59, s59, 2")
    A("s_add_u32 s78, s58, s59")
    A("s_bfe_u32 s58, s57, 0x10001")
    A("s_mul_i32 s58, s58, 1280")
    A("s_lshl_b32 s59, s56, 6")
    A("s_add_u32 s58, s58, s59")
    A("s_and_b32 s59, s57, 1")
    A("s_lshl_b32 s59, s59, 5")
    A("s_add_u32 s58, s58, s59")
    A("s_add_u32 s58, s58, 1024")
    A("s_cmp_ge_u32 s57, 16")
    A("s_cselect_b32 s78, s58, s78")
    A("s_cselect_b32 s58, 2, 4")
    A("v_lshlrev_b32 v165, s58, v1")
    A("s_mov_b32 s52, s24")
    A("s_mov_b32 s53, s25")
    A("s_movk_i32 s54, 2560")
    A("s_mov_b32 s77, s3")
    stamp(4)
    A("s_barrier")
    A(f"s_mov_b32 s57, {SPIN}")
    A("buffer_load_dwordx4 v[24:27], v147, s[44:47], s73 offen sc1")
    if not rpipe:
        A("s_waitcnt vmcnt(0)")
        A("s_branch L_pr_c")
    A.label("L_pr")
    if rsleep:
        A(f"s_sleep {rsleep}")
    A("buffer_load_dwordx4 v[24:27], v147, s[44:47], s73 offen sc1")
    A("s_mov_b64 exec, -1")
    A(f"s_waitcnt vmcnt({1 if rpipe else 0})")
    A.label("L_pr_c", pad=False)
    check([24], 10, 32)
    A("v_cmp_ne_u32 vcc, 0, v10")
    A("s_sub_u32 s57, s57, 1")
    A("s_cbranch_scc1 L_pr_ok")
    A("s_and_b64 exec, vcc, exec")
    A("s_cbranch_scc1 L_pr")
    A("s_mov_b64 exec, -1")
    A.label("L_pr_ok", pad=False)
    A("v_and_b32 v16, 0xffffff00, v24")
    A("v_and_b32 v17, 0xffffff00, v26")
    stamp(1)
    allreduce("v_add_f32", [16, 17], [18, 19], (8, 16, 32))
    A(f"ds_write_b64 v146, v[16:17] offset:{OL}")
    A("s_waitcnt lgkmcnt(0)")
    A("s_barrier")
    stamp(2)
    A(f"ds_read_b128 v[16:19], v164 offset:{OL}")
    A(f"ds_read_b128 v[20:23], v164 offset:{OL+64}")
    A("s_waitcnt lgkmcnt(0)")
    for n in range(4):
        A(f"v_add_f32 v{16+n}, v{16+n}, v{20+n}")
    A("v_cvt_pk_bf16_f32 v40, v16, v17")
    A("v_cvt_pk_bf16_f32 v41, v18, v19")
    A("v_cndmask_b32 v32, 0, v40, s[70:71]")
    A("v_cndmask_b32 v33, 0, v41, s[70:71]")
    A("v_cndmask_b32 v34, v40, 0, s[70:71]")
    A("v_cndmask_b32 v35, v41, 0, s[70:71]")
    for c in (0, 1, 2, 3, 8, 9, 4, 5, 6, 7):
        acc = 100 + 4 * (c & 3) if c < 8 else 116 + 4 * (c - 8)
        a = "v[34:35]" if 4 <= c < 8 else "v[32:33]"
        cc = f"v[{acc}:{acc+3}]" if 4 <= c < 8 else "0"
        A(f"v_mfma_f32_16x16x16_bf16 v[{acc}:{acc+3}], {a}, v[{FO+2*c}:{FO+2*c+1}], {cc}")
    outs = [36, 38, 8, 10, 12, 14]
    accs = [116, 120, 100, 104, 108, 112]
    zs = [Z + 4, Z + 5, Z, Z + 1, Z + 2, Z + 3]
    for o, ac, z in zip(outs, accs, zs):
        A(f"v_fma_f32 v{o}, v{ac}, v78, v{z}")
        A(f"v_bfi_b32 v{o}, s37, v4, v{o}")
        if o == 38:
            A("s_mov_b64 exec, 0x0000ffff0000ffff") if False else None
    A("buffer_store_dwordx4 v[8:11], v147, s[44:47], s74 offen sc1")
    A("buffer_store_dwordx4 v[12:15], v147, s[44:47], s74 offen offset:1024 sc1")
    A("s_mov_b32 exec_lo, 0xffff")
    A("s_mov_b32 exec_hi, 0xffff")
    A("buffer_store_dwordx4 v[36:39], v148, s[44:47], s74 offen offset:2048 sc1")
    A("s_mov_b64 exec, -1")
    stamp(5)
    A("s_cmp_ge_u32 s2, 80")
    A("s_cbranch_scc1 L_h_done")
    A.label("L_red", pad=False)
    SA = 204
    for i in range(1, 4):
        A(f"s_add_u32 s{60+i}, s76, {8*10240*i}")
    A("s_mov_b32 s60, s76")
    A(f"s_mov_b32 s57, {SPIN}")
    for i in range(4):
        A(f"buffer_load_dwordx4 v[{SA+4*i}:{SA+4*i+3}], v200, s[44:47], s{60+i} offen sc1")
    A("s_mov_b32 s52, s24")
    A("s_mov_b32 s53, s25")
    A("s_movk_i32 s54, 2560")
    A("s_waitcnt vmcnt(0)")
    A("s_branch L_y_c")
    A.label("L_y1", pad=False)
    A(f"s_sleep {hsleep}")
    A("s_mov_b64 exec, 0xff")
    A(f"buffer_load_dwordx4 v[{SA}:{SA+3}], v200, s[44:47], s60 offen sc1")
    A("s_waitcnt vmcnt(0)")
    check([SA], 236, 240, T="v202")
    A("v_cmp_ne_u32 vcc, 0, v236")
    A("s_sub_u32 s57, s57, 1")
    A("s_cbranch_scc1 L_y2")
    A("s_cbranch_vccnz L_y1")
    A.label("L_y2", pad=False)

    def yround():
        for i in range(4):
            A(f"s_or_b64 exec, s[{64+2*i}:{65+2*i}], 1")
            A(f"buffer_load_dwordx4 v[{SA+4*i}:{SA+4*i+3}], v200, s[44:47], s{60+i} offen sc1")
        A("s_mov_b64 exec, -1")

    if ypipe:
        yround()
        A.label("L_y2l", pad=False)
        if psleep:
            A(f"s_sleep {psleep}")
    yround()
    A(f"s_waitcnt vmcnt({4 if ypipe else 0})")

    def ycheck():
        for i in range(4):
            check([SA + 4 * i], 236, 240, T="v202")
            A(f"v_cmp_ne_u32 s[{64+2*i}:{65+2*i}], 0, v236")
        A("s_or_b64 s[58:59], s[64:65], s[66:67]")
        A("s_or_b64 s[72:73], s[68:69], s[70:71]")
        A("s_or_b64 s[58:59], s[58:59], s[72:73]")
        A("s_cbranch_scc0 L_y_ok")

    ycheck()
    A("s_sub_u32 s57, s57, 1")
    A(f"s_cbranch_scc0 {'L_y2l' if ypipe else 'L_y2'}")
    A("s_branch L_y_ok")
    A.label("L_y_c", pad=False)
    ycheck()
    A("s_and_b32 s58, s64, 0xff")
    A("s_cbranch_scc1 L_y1")
    A("s_branch L_y2")
    A.label("L_y_ok", pad=False)
    st = SA
    for n in range(8):
        A(f"v_and_b32 v{220+n}, 0xffffff00, v{st+2*n}")
    for k in (0, 1):
        A(f"v_add_f32 v{220+k}, v{220+k}, v{222+k}")
        A(f"v_add_f32 v{224+k}, v{224+k}, v{226+k}")
    A("v_add_f32 v238, v220, v224")
    A("v_add_f32 v239, v221, v225")
    r0, r1 = 238, 239
    allreduce("v_add_f32", [r0, r1], [240, 241], (8, 16, 32))
    A(f"ds_write_b64 v201, v[{r0}:{r1}] offset:{RED}")
    A("s_waitcnt lgkmcnt(0)")
    A("s_barrier")
    A("s_cmp_lg_u32 s77, 0")
    A("s_cbranch_scc1 L_h_done")
    for w in range(1, 8):
        A(f"ds_read_b64 v[{238+2*w}:{239+2*w}], v201 offset:{RED+64*w}")
    A("s_waitcnt lgkmcnt(0)")
    for step in (1, 2, 4):
        for i in range(0, 8, 2 * step):
            for k in range(2):
                A(f"v_add_f32 v{238+2*i+k}, v{238+2*i+k}, v{238+2*(i+step)+k}")
    A(f"v_cvt_pk_bf16_f32 v10, v{r0}, v{r1}")
    A("s_mov_b64 exec, 0xff")
    A("buffer_store_dword v10, v165, s[52:55], s78 offen")
    A("s_cmp_lg_u32 s2, 0")
    A("s_cbranch_scc1 L_h_done")
    A("s_mov_b64 exec, 1")
    A(f"buffer_store_dword v4, v7, s[44:47], 0 offen offset:{EPOCH} sc1")
    if hstop:
        A("s_branch L_h_done")
        A.label("L_h_stop")
        A("s_barrier")
    A.label("L_h_done", pad=False)
    if stamps:
        A("s_mov_b64 exec, -1")
        A("s_waitcnt vmcnt(0)")
        stamp(7)
        stamp_out("s3")
    A("s_endpgm")

    A.raw(".p2align 6")
    A.label("L_stream", pad=False)
    A("s_sub_u32 s3, s3, 4")
    if sprio:
        A(f"s_setprio {sprio}")
    A("s_lshl_b32 s56, s33, 2")
    A("s_add_u32 s56, s56, s32")
    A("s_lshl_b32 s56, s56, 19")
    A("s_lshl_b32 s57, s3, 12")
    A("v_lshlrev_b32 v4, 4, v1")
    A("v_add_u32 v1, s57, v4")
    A("s_mov_b32 s42, 0x80000")
    if rot == 1:
        A("s_lshr_b32 s39, s2, 3")
    elif rot == 2:
        A("s_lshr_b32 s39, s2, 3")
        A("s_lshl_b32 s62, s34, 2")
        A("s_add_u32 s39, s39, s62")
    elif rot == 3:
        A("s_lshl_b32 s39, s34, 2")
    elif rot == 4:
        A("s_mul_i32 s39, s2, 0x9E3779B1")
        A("s_lshr_b32 s39, s39, 27")
    if rot:
        A("s_and_b32 s39, s39, 31")
        A("s_lshl_b32 s39, s39, 14")
    A("s_waitcnt lgkmcnt(0)")
    A("s_add_u32 s40, s6, s56")
    A("s_addc_u32 s41, s7, 0")
    A("s_add_u32 s48, s8, s56")
    A("s_addc_u32 s49, s9, 0")
    RING, SC, AO = 64, 8, 16

    def issue2(pc, hf, sreg):
        for t in (2 * hf, 2 * hf + 1):
            r = RING + 16 * pc + 4 * t
            A(f"buffer_load_dwordx4 v[{r}:{r+3}], v1, s[40:43], {sreg} offen offset:{1024*t} {pol}")

    for pc in range(8):
        A(f"s_mov_b32 s58, {16384*pc}")
        for hf in range(2):
            if 2 * pc + hf == early:
                A("s_barrier")
            if 4 * pc + 2 * hf >= P0:
                A(f"s_waitcnt vmcnt({P0-2})")
            issue2(pc, hf, "s58")
    PARK = 192
    A("s_mov_b32 s50, 0x80000")
    for pk in range(park):
        A(f"s_waitcnt vmcnt({P-4})")
        if rot:
            A(f"s_add_u32 s58, s39, {16384*(32-park+pk)}")
            A("s_and_b32 s58, s58, 0x7ffff")
        else:
            A(f"s_mov_b32 s58, {16384*(32-park+pk)}")
        for t in range(4):
            r = PARK + 16 * pk + 4 * t
            A(f"buffer_load_dwordx4 v[{r}:{r+3}], v1, s[48:51], s58 offen offset:{1024*t} {pol}")
    A("s_mov_b32 s44, s28")
    A("s_mov_b32 s45, s29")
    A("v_and_b32 v4, 2, v0")
    A("v_cmp_ne_u32 s[80:81], 0, v4")
    A("v_and_b32 v4, 1, v0")
    A("v_cmp_ne_u32 s[82:83], 0, v4")
    for r in range(8):
        A(f"v_mov_b32 v{AO+r}, 0")
    A("v_lshrrev_b32 v40, 1, v2")
    A("v_lshlrev_b32 v40, 12, v40")
    A("v_and_b32 v41, 1, v2")
    A("v_lshl_add_u32 v41, v41, 2, v3")
    A("v_lshl_add_u32 v40, v41, 4, v40")
    A("s_lshl_b32 s61, s30, 15")
    A("s_lshl_b32 s56, s38, 9")
    A("s_add_u32 s61, s61, s56")
    A("s_lshl_b32 s56, s3, 7")
    A("s_add_u32 s61, s61, s56")
    A(f"s_add_u32 s61, s61, {REC}")
    A("s_lshl_b32 s56, s3, 3")
    A("v_mov_b32 v41, s56")
    A("v_lshlrev_b32 v24, 4, v2")
    A("v_mov_b32 v25, 0")
    if not (noq or noh or hstop):
        lds_poll("L_ps", [f"ds_read_b64 v[44:45], v25 offset:{QF}"], 44, 1)
    A(f"ds_read_b128 v[4:7], v24 offset:{Q_LDS}")
    stamp(1)
    A("v_mov_b32 v47, v45")
    A("s_add_u32 s77, s3, 4")
    A("v_and_b32 v48, 63, v0")
    red_setup("s77", "v48", "v45")
    A("s_mov_b32 s59, 0")
    if rot:
        A(f"s_add_u32 s60, s39, {8*16384}")
    else:
        A(f"s_mov_b32 s60, {8*16384}")
    A("s_waitcnt lgkmcnt(0)")

    def pace_issue(pc, hf, vf=False):
        if hf == 0:
            A(f"s_add_u32 s58, s60, {16384*pc}")
        if vf and fast_it < 3:
            A(f"s_cmp_ge_u32 s59, {fast_it}")
            A(f"s_cbranch_scc1 L_vf{pc}_{hf}")
            A(f"s_waitcnt vmcnt({P-2})")
            A.label(f"L_vf{pc}_{hf}", pad=False)
            A(f"s_waitcnt vmcnt({PF-2})")
        else:
            A(f"s_waitcnt vmcnt({P-2})")
        issue2(pc, hf, "s58")

    A.raw(".p2align 6")
    A.label("L_kloop")
    A("s_cmp_eq_u32 s59, 3")
    A("s_cselect_b32 s40, s48, s40")
    A("s_cselect_b32 s41, s49, s41")
    A(f"s_cselect_b32 s60, {'s39' if rot else '0'}, s60")
    for r in range(6):
        A(f"v_mov_b32 v{SC+r}, v{SC+r+2}")
    BR, CR = 32, 36
    for pc in range(8):
        a = 24 + 4 * (pc & 1)
        if P > 28:
            A("s_waitcnt vmcnt(28)")
        for d in range(4):
            for t in range(4):
                r = RING + 16 * pc + 4 * t + d
                if d == 0:
                    A(f"v_dot2_f32_bf16 v{a+t}, v{r}, v{4+d}, 0")
                else:
                    A(f"v_dot2c_f32_bf16 v{a+t}, v{r}, v{4+d}")
        pace_issue(pc, 0)
        A(f"v_add_f32_dpp v{a}, v{a}, v{a} row_ror:8 row_mask:0xf bank_mask:0x3")
        A(f"v_add_f32_dpp v{a+2}, v{a+2}, v{a+2} row_ror:8 row_mask:0xf bank_mask:0x3")
        A(f"v_add_f32_dpp v{a}, v{a+1}, v{a+1} row_ror:8 row_mask:0xf bank_mask:0xc")
        A(f"v_add_f32_dpp v{a+2}, v{a+3}, v{a+3} row_ror:8 row_mask:0xf bank_mask:0xc")
        bq = BR + (pc & 1)
        A(f"v_add_f32_dpp v{bq}, v{a}, v{a} row_shl:4 row_mask:0xf bank_mask:0x5")
        A(f"v_add_f32_dpp v{bq}, v{a+2}, v{a+2} row_shr:4 row_mask:0xf bank_mask:0xa")
        if pc & 1:
            cq = CR + ((pc >> 1) & 1)
            A(f"v_cndmask_b32 v34, v{BR+1}, v{BR}, s[80:81]")
            A(f"v_cndmask_b32 v35, v{BR}, v{BR+1}, s[80:81]")
            A(f"v_add_f32_dpp v{cq}, v34, v35 quad_perm:[2,3,0,1] {DPP}")
        if (pc & 3) == 3:
            A(f"v_cndmask_b32 v34, v{CR+1}, v{CR}, s[82:83]")
            A(f"v_cndmask_b32 v35, v{CR}, v{CR+1}, s[82:83]")
            A(f"v_add_f32_dpp v{SC+6+(pc>>2)}, v34, v35 quad_perm:[1,0,3,2] {DPP}")
        pace_issue(pc, 1)
    A(f"s_add_u32 s60, s60, {8*16384}")
    A("s_add_u32 s59, s59, 1")
    if stamps:
        A("s_cmp_lg_u32 s59, 1")
        A("s_cbranch_scc1 L_st4")
        stamp(4)
        A.label("L_st4", pad=False)
    A("s_cmp_lt_u32 s59, 4")
    A("s_cbranch_scc1 L_kloop")
    stamp(2)
    A(f"s_mov_b32 s56, 0x{SCALE:08x}")
    A(f"s_mov_b32 s57, 0x{LOG2E:08x}")
    for rnd in range(2):
        for n in range(0, 8, 2):
            A(f"v_cvt_pk_bf16_f32 v{24+n}, v{SC+n}, v{SC+n+1}")
        for n in range(0, 8, 2):
            A(f"v_lshlrev_b32 v{SC+n}, 16, v{24+n}")
            A(f"v_and_b32 v{SC+n+1}, 0xffff0000, v{24+n}")
        if rnd == 0:
            for n in range(8):
                A(f"v_mul_f32 v{SC+n}, s56, v{SC+n}")
    A(f"v_max3_f32 v32, v{SC}, v{SC+1}, v{SC+2}")
    A(f"v_max3_f32 v33, v{SC+3}, v{SC+4}, v{SC+5}")
    A(f"v_max3_f32 v32, v32, v{SC+6}, v{SC+7}")
    A("v_max_f32 v32, v32, v33")
    allreduce("v_max_f32", [32], [33], (1, 2, 4, 8, 16, 32))
    for n in range(8):
        A(f"v_sub_f32 v{SC+n}, v{SC+n}, v32")
    for n in range(8):
        A(f"v_mul_f32 v{SC+n}, s57, v{SC+n}")
    for n in range(8):
        A(f"v_exp_f32 v{SC+n}, v{SC+n}")
    for n in range(0, 8, 2):
        A(f"v_add_f32 v{24+n}, v{SC+n}, v{SC+n+1}")
    A("v_add_f32 v24, v24, v26")
    A("v_add_f32 v28, v28, v30")
    A("v_add_f32 v33, v24, v28")
    for n in range(8):
        A(f"v_mov_b32_dpp v{24+n}, v{SC+n} row_ror:8 {DPP}")
    for n in range(8):
        A(f"v_cvt_pk_bf16_f32 v{SC+n}, v{SC+n}, v{24+n}")
    allreduce("v_add_f32", [33], [36], (1, 2, 8, 4, 16, 32))
    A("v_mov_b32 v34, 1")
    A("v_mov_b32 v35, 0")
    A("s_lshl_b32 s56, s3, 4")
    A("v_mov_b32 v36, s56")
    A("s_mov_b64 exec, 1")
    A(f"ds_write_b128 v36, v[32:35] offset:{MLL}")
    A("s_mov_b64 exec, -1")
    A("s_mov_b32 s59, 0")

    def vbody(last):
        for pc in range(8):
            for pr in range(2):
                if last:
                    A(f"s_waitcnt vmcnt({30-4*pc-2*pr})")
                t0 = 24 + 8 * pr
                ra = RING + 16 * pc + 8 * pr
                rb = ra + 4
                for q in range(4):
                    A(f"v_perm_b32 v{t0+2*q}, v{rb+q}, v{ra+q}, s35")
                    A(f"v_perm_b32 v{t0+2*q+1}, v{rb+q}, v{ra+q}, s36")
                if not last:
                    if gate >= 0 and (2 * pc + pr) == gate % 16 and not (noh or hstop):
                        A(f"s_cmp_lg_u32 s59, {gate // 16}")
                        A("s_cbranch_scc1 L_gate")
                        lds_poll("L_pc2", [f"ds_read_b64 v[42:43], v41 offset:{SCL}"], 43, 1)
                        A.label("L_gate", pad=False)
                    pace_issue(pc, pr, True)
                lane = bitrev4(4 * (pc & 3) + 2 * pr)
                for n in range(8):
                    A(f"v_dot2c_f32_bf16_dpp v{AO+n}, v{SC+(pc>>2)}, v{t0+n} row_newbcast:{lane} {DPP}")

    A.raw(".p2align 6")
    A.label("L_vloop")
    vbody(False)
    for r in range(6):
        A(f"v_mov_b32 v{SC+r}, v{SC+r+2}")
    A(f"s_add_u32 s60, s60, {8*16384}")
    A("s_add_u32 s59, s59, 1")
    if stamps:
        A("s_cmp_lg_u32 s59, 1")
        A("s_cbranch_scc1 L_st5")
        stamp(5)
        A.label("L_st5", pad=False)
    A("s_cmp_lt_u32 s59, 3")
    A("s_cbranch_scc1 L_vloop")
    stamp(6)
    if not (noh or hstop) and gate < 0:
        lds_poll("L_pc2", [f"ds_read_b64 v[42:43], v41 offset:{SCL}"], 43, 1)
    if noq:
        A("v_mov_b32 v25, 0")
        lds_poll("L_ps", [f"ds_read_b64 v[44:45], v25 offset:{QF}"], 44, 1)
        A("v_mov_b32 v47, v45")
    vbody(True)
    for c in range(4):
        A(f"v_permlane32_swap_b32 v{AO+c}, v{AO+c+4}")
    for c in range(4):
        A(f"v_add_f32 v{AO+c}, v{AO+c}, v{AO+c+4}")
    for c in range(2):
        A(f"v_permlane16_swap_b32 v{AO+c}, v{AO+c+2}")
    for c in range(2):
        A(f"v_add_f32 v{AO+c}, v{AO+c}, v{AO+c+2}")
    A(f"v_mul_f32 v44, v{AO}, v42")
    A(f"v_mul_f32 v46, v{AO+1}, v42")
    A("v_bfi_b32 v44, s37, v45, v44")
    A("v_bfi_b32 v46, s37, v45, v46")
    A("buffer_store_dwordx4 v[44:47], v40, s[44:47], s61 offen sc1")
    stamp(3)
    A("s_barrier")
    if stamps:
        A("s_add_u32 s3, s3, 4")
    if not (noh or hstop):
        A("s_cmp_ge_u32 s2, 80")
        A("s_cbranch_scc1 L_h_done")
        A("s_barrier")
        A("s_branch L_red")
    else:
        A("s_branch L_h_done")
    A.label("L_end", pad=False)
    A("s_endpgm")
    A.raw("L_code_end:")
    A.raw('.section .rodata,"a"')
    A.raw(".p2align 6")
    A.raw(f".amdhsa_kernel {NAME}_kernel")
    A.raw("  .amdhsa_next_free_vgpr 256")
    A.raw("  .amdhsa_next_free_sgpr 102")
    A.raw("  .amdhsa_accum_offset 256")
    A.raw("  .amdhsa_group_segment_fixed_size 0")
    A.raw("  .amdhsa_kernarg_size 104")
    A.raw("  .amdhsa_user_sgpr_count 2")
    A.raw("  .amdhsa_user_sgpr_kernarg_segment_ptr 1")
    A.raw("  .amdhsa_system_sgpr_workgroup_id_x 1")
    A.raw("  .amdhsa_float_denorm_mode_32 3")
    A.raw("  .amdhsa_float_denorm_mode_16_64 3")
    A.raw(".end_amdhsa_kernel")
    return A


if __name__ == "__main__":
    out = sys.argv[1]
    kw = {}
    for a in sys.argv[2:]:
        for kv in a.split(","):
            k, v = kv.split("=")
            kw[k] = int(v) if v.lstrip("-").isdigit() else ("" if v == "none" else v)
    A = gen(**kw)
    open(out, "w").write(A.text())
    print(out, "instructions:", A.ninstr)
```

```python
import sys
from asmlib import Asm

NAME = "gated_mix__gqa_block_cached__geglu_ffn__decode"

EPOCH = 0
QP = 0x10000
FP = 0x60000
ML = 0xA0000
HINT = 0xB0000
REC = 0x100000
YB = 0x200000
WS_BYTES = 0x480000
Q_LDS, MLL, QF, GF, SCL, RED, OL, LDS_BYTES = 0, 1024, 1088, 1104, 1120, 2048, 3072, 6144
SPIN = 60000
LOG2E = 0x3FB8AA3B
SCALE = 0x3DB504F3
DPP = "row_mask:0xf bank_mask:0xf"


def bitrev4(t):
    return ((t & 1) << 3) | ((t & 2) << 1) | ((t & 4) >> 1) | ((t & 8) >> 3)


def gen(P=6, stamps=0, pol="nt", wpol="nt", sleep=1, prefetch=1, hprio=1, early=0, sprio=0, ysleep=1,
        rsleep=3, hsleep=6, noh=0, hstop=0, rpipe=1, P0=None, PF=16, fast_it=3, psleep=4, gate=-1, row=1, ypipe=1):
    park = 0
    rot = 0
    noq = 0
    P0 = P0 or P
    A = Asm()
    hdr = open("cdna_kernels/%s.s.ref" % NAME).read().split("; Override")[0]
    A.raw(hdr.rstrip())
    A.raw(f"; @launch grid=(256,1,1) block=(512,1,1) lds={LDS_BYTES}")
    A.raw('.amdgcn_target "amdgcn-amd-amdhsa--gfx950"')
    A.raw(".text")
    A.raw(f".globl {NAME}_kernel")
    A.raw(".p2align 8")
    A.raw(f".type {NAME}_kernel,@function")
    A.raw(f"{NAME}_kernel:")

    def stamp(k):
        if stamps:
            A(f"s_memrealtime s[{84+2*k}:{85+2*k}]")

    def stamp_out(role_sreg):
        if not stamps:
            return
        A("s_waitcnt lgkmcnt(0)")
        A("s_lshl_b32 s56, s2, 9")
        A(f"s_lshl_b32 s57, {role_sreg}, 6")
        A("s_add_u32 s56, s56, s57")
        A("s_add_u32 s56, s56, 0x10000000")
        A("s_add_u32 s52, s28, s56")
        A("s_addc_u32 s53, s29, 0")
        A("s_mov_b32 s54, 64")
        A("s_mov_b32 s55, 0x20000")
        A("v_mov_b32 v2, 0")
        A("s_mov_b64 exec, 1")
        for k in range(8):
            A(f"v_mov_b32 v16, s{84+2*k}")
            A(f"v_mov_b32 v17, s{85+2*k}")
            A(f"buffer_store_dwordx2 v[16:17], v2, s[52:55], 0 offen offset:{8*k}")
            A("s_nop 1")
        A("s_mov_b64 exec, -1")

    def check(regs, bad, tmp, T="v4"):
        for n, r in enumerate(regs):
            A(f"v_bitop3_b32 v{tmp}, v{r}, v{r+2}, {T} bitop3:0x7e")
            A(f"v_bitop3_b32 v{tmp+1}, v{r+1}, v{r+3}, {T} bitop3:0x7e")
            if n == 0:
                A(f"v_and_or_b32 v{bad}, v{tmp}, s37, v{tmp+1}")
            else:
                A(f"v_and_or_b32 v{tmp}, v{tmp}, s37, v{tmp+1}")
                A(f"v_or_b32 v{bad}, v{bad}, v{tmp}")

    def poll(lbl, regs, voff, soff, imm, bad, tmp, slp=sleep):
        A(f"s_mov_b32 s57, {SPIN}")
        A.label(lbl)
        for n, r in enumerate(regs):
            A(f"buffer_load_dwordx4 v[{r}:{r+3}], {voff}, s[44:47], {soff} offen offset:{imm[n]} sc1")
        A("s_waitcnt vmcnt(0)")
        check(regs, bad, tmp)
        A(f"v_cmp_ne_u32 vcc, 0, v{bad}")
        A(f"s_cbranch_vccz {lbl}_ok")
        if slp:
            A(f"s_sleep {slp}")
        A("s_sub_u32 s57, s57, 1")
        A(f"s_cbranch_scc0 {lbl}")
        A.label(lbl + "_ok", pad=False)

    TQ = [246, 247, 248, 249]

    def tags(T):
        A(f"v_mov_b32 v{TQ[0]}, {T}")
        A(f"v_lshrrev_b32 v{TQ[1]}, 9, {T}")
        A(f"v_lshrrev_b32 v{TQ[2]}, 18, {T}")
        A(f"v_lshrrev_b32 v{TQ[3]}, 23, {T}")

    def pack4(dst, src):
        for k in range(4):
            A(f"v_add_u32 v{dst+k}, 0x100, v{src[k]}")
        for k in range(4):
            A(f"v_bfi_b32 v{dst+k}, s39, v{TQ[k]}, v{dst+k}")

    def check4(regs, bad):
        first = True
        for r in regs:
            for k in range(4):
                if first:
                    A(f"v_xor_b32 v{bad}, v{r+k}, v{TQ[k]}")
                    first = False
                else:
                    A(f"v_bitop3_b32 v{bad}, v{r+k}, v{TQ[k]}, v{bad} bitop3:0xbe")
        A(f"v_and_b32 v{bad}, 0x1ff, v{bad}")

    def poll4(lbl, regs, voff, soff, imm, bad, slp):
        A(f"s_mov_b32 s57, {SPIN}")
        A.label(lbl)
        for n, r in enumerate(regs):
            A(f"buffer_load_dwordx4 v[{r}:{r+3}], {voff}, s[44:47], {soff} offen offset:{imm[n]} sc1")
        A("s_mov_b64 exec, -1")
        A("s_waitcnt vmcnt(0)")
        check4(regs, bad)
        A(f"v_cmp_ne_u32 vcc, 0, v{bad}")
        A("s_sub_u32 s57, s57, 1")
        A(f"s_cbranch_scc1 {lbl}_ok")
        A(f"s_cbranch_vccz {lbl}_ok")
        A(f"s_sleep {slp}")
        A("s_mov_b64 exec, vcc")
        A(f"s_branch {lbl}")
        A.label(lbl + "_ok", pad=False)

    def lds_poll(lbl, rd, flagreg, slp):
        A(f"s_mov_b32 s57, {SPIN*16}")
        A.label(lbl)
        for r in rd:
            A(r)
        A("s_waitcnt lgkmcnt(0)")
        A(f"v_cmp_ne_u32 vcc, 1, v{flagreg}")
        A(f"s_cbranch_vccz {lbl}_ok")
        A(f"s_sleep {slp}")
        A("s_sub_u32 s57, s57, 1")
        A(f"s_cbranch_scc0 {lbl}")
        A.label(lbl + "_ok", pad=False)

    def allreduce(op, regs, tmps, levels):
        ctrl = {1: "quad_perm:[1,0,3,2]", 2: "quad_perm:[2,3,0,1]", 4: "row_ror:4", 8: "row_ror:8", "hm": "row_half_mirror"}
        for lv in levels:
            if lv in ctrl:
                for r in regs:
                    A(f"{op}_dpp v{r}, v{r}, v{r} {ctrl[lv]} {DPP}")
            else:
                for r, t in zip(regs, tmps):
                    A(f"v_mov_b32 v{t}, v{r}")
                for r, t in zip(regs, tmps):
                    A(f"v_permlane{lv}_swap_b32 v{r}, v{t}")
                for r, t in zip(regs, tmps):
                    A(f"{op} v{r}, v{r}, v{t}")

    def round_pair(a, b, t):
        A(f"v_cvt_pk_bf16_f32 v{t}, v{a}, v{b}")
        A(f"v_lshlrev_b32 v{a}, 16, v{t}")
        A(f"v_and_b32 v{b}, 0xffff0000, v{t}")

    def red_setup(wave, lane):
        A(f"v_lshrrev_b32 v200, 3, {lane}")
        A("v_mul_u32_u24 v200, 5120, v200")
        A(f"v_and_b32 v201, 7, {lane}")
        A("v_lshl_add_u32 v200, v201, 4, v200")
        A("s_lshl_b32 s76, s2, 7")
        A(f"s_mul_i32 s56, {wave}, {32*5120}")
        A("s_add_u32 s76, s76, s56")
        A(f"s_add_u32 s76, s76, {YB}")
        A(f"s_lshl_b32 s56, {wave}, 7")
        A("v_lshl_add_u32 v201, v201, 4, s56")
        A(f"v_lshrrev_b32 v202, 4, {lane}")
        A("v_lshl_add_u32 v201, v202, 2, v201")

    A("s_cmp_ge_u32 s2, 256")
    A("s_cbranch_scc1 L_end")
    A("s_load_dwordx16 s[4:19], s[0:1], 0")
    A("s_load_dwordx8 s[20:27], s[0:1], 64")
    A("s_load_dwordx2 s[28:29], s[0:1], 96")
    stamp(0)
    if stamps:
        for k in range(1, 8):
            A(f"s_mov_b64 s[{84+2*k}:{85+2*k}], 0")
    A("v_lshrrev_b32 v1, 6, v0")
    A("v_and_b32 v2, 15, v0")
    A("v_readfirstlane_b32 s3, v1")
    A("v_and_b32 v1, 63, v0")
    A("v_lshrrev_b32 v3, 4, v1")
    A("s_and_b32 s34, s2, 7")
    A("s_lshr_b32 s56, s2, 6")
    A("s_lshl_b32 s56, s56, 3")
    A("s_add_u32 s30, s34, s56")
    A("s_lshr_b32 s38, s2, 3")
    A("s_and_b32 s38, s38, 7")
    A("s_and_b32 s32, s38, 3")
    A("s_lshr_b32 s31, s38, 2")
    A("s_lshl_b32 s33, s31, 5")
    A("s_add_u32 s33, s33, s30")
    A("s_mov_b32 s35, 0x05040100")
    A("s_mov_b32 s36, 0x07060302")
    A("s_movk_i32 s37, 0xff")
    A("s_movk_i32 s39, 0x1ff")
    A("s_mov_b32 s43, 0x20000")
    A("s_mov_b32 s47, 0x20000")
    A("s_mov_b32 s51, 0x20000")
    A("s_mov_b32 s55, 0x20000")
    A(f"s_mov_b32 s46, {WS_BYTES}")
    A("s_cmp_ge_u32 s3, 4")
    A("s_cbranch_scc1 L_stream")

    if noh:
        A("s_waitcnt lgkmcnt(0)")
        A("s_barrier")
        A("s_barrier")
        A("s_branch L_h_done")
    if hprio:
        A(f"s_setprio {hprio}")
    A("s_lshr_b32 s63, s2, 3")
    A("s_lshr_b32 s64, s2, 2")
    A("s_and_b32 s64, s64, 1")
    A("s_and_b32 s65, s2, 3")
    A("s_movk_i32 s56, 3456")
    A("s_lshl_b32 s57, s63, 7")
    A("s_movk_i32 s59, 256")
    A("s_movk_i32 s61, 32")
    A("s_movk_i32 s71, 16")
    A("s_lshl_b32 s62, s2, 9")
    A(f"s_add_u32 s62, s62, {FP}")
    A(f"s_mov_b32 s42, {640*3456}")
    A("s_cmp_lg_u32 s3, 0")
    A("s_cbranch_scc1 L_h_notq")
    A("s_movk_i32 s56, 8192")
    A("s_lshl_b32 s57, s30, 8")
    A("s_lshl_b32 s66, s31, 7")
    A("s_add_u32 s57, s57, s66")
    A(f"s_mov_b32 s59, {32*2048}")
    A("s_movk_i32 s61, 16")
    A("s_movk_i32 s71, 1024")
    A("s_lshl_b32 s62, s30, 11")
    A("s_add_u32 s62, s62, s66")
    A("s_lshl_b32 s66, s32, 8")
    A("s_add_u32 s62, s62, s66")
    A(f"s_add_u32 s62, s62, {QP}")
    A(f"s_mov_b32 s42, {640*8192}")
    A("s_mov_b32 s65, s32")
    A.label("L_h_notq", pad=False)
    A("s_mul_i32 s66, s65, 160")
    A("s_mul_i32 s66, s66, s56")
    A("s_add_u32 s57, s57, s66")
    A("s_mul_i32 s58, s65, 320")
    A("s_mul_i32 s67, s56, 25")
    A("v_lshlrev_b32 v5, 3, v3")
    A("v_mul_lo_u32 v5, v5, s56")
    A("v_lshl_add_u32 v5, v2, 3, v5")
    A("v_lshrrev_b32 v6, 3, v2")
    A("v_mul_u32_u24 v6, 1280, v6")
    A("v_lshl_add_u32 v6, v3, 4, v6")
    A("v_mov_b32 v7, 0")
    A("s_movk_i32 s50, 2560")
    A("s_cmp_eq_u32 s3, 0")
    A("s_cselect_b32 s66, 0, s2")
    A("s_cmp_ge_u32 s3, 2")
    A("s_cselect_b32 s66, 255, s66")
    A("s_waitcnt lgkmcnt(0)")
    A("s_mov_b32 s44, s28")
    A("s_mov_b32 s45, s29")
    A("s_mov_b32 s48, s4")
    A("s_mov_b32 s49, s5")
    A("s_cmp_eq_u32 s64, 0")
    A("s_cselect_b32 s40, s16, s18")
    A("s_cselect_b32 s41, s17, s19")
    A("s_cmp_eq_u32 s3, 0")
    A("s_cselect_b32 s40, s10, s40")
    A("s_cselect_b32 s41, s11, s41")
    A("s_cmp_ge_u32 s66, 216")
    A("s_cbranch_scc1 L_h_idle0")
    W0, X0, FR0, AC0 = 16, 96, 116, 132
    for ks in range(5):
        A(f"buffer_load_dwordx4 v[{X0+4*ks}:{X0+4*ks+3}], v6, s[48:51], s58 offen offset:{64*ks}")
        for e in range(8):
            r = W0 + 2 * (8 * ks + e)
            A(f"buffer_load_dwordx2 v[{r}:{r+1}], v5, s[40:43], s57 offen {wpol}")
            A(f"s_add_u32 s57, s57, {'s56' if e < 7 else 's67'}")
    A(f"buffer_load_dword v4, v7, s[44:47], 0 offen offset:{EPOCH} sc1")
    A("s_barrier")
    stamp(1)
    A("v_lshrrev_b32 v8, 1, v3")
    A("v_mul_lo_u32 v8, v8, s59")
    A("v_lshrrev_b32 v9, 1, v2")
    A("v_mul_lo_u32 v9, v9, s61")
    A("v_add_u32 v8, v8, v9")
    A("v_and_b32 v9, 1, v2")
    A("v_mul_lo_u32 v9, v9, s71")
    A("v_add_u32 v8, v8, v9")
    for ks in range(5):
        A(f"s_waitcnt vmcnt({46-9*(ks+1)})")
        for c in range(4):
            for d in range(4):
                lo = W0 + 2 * (8 * ks + 2 * d) + (c >> 1)
                hi = W0 + 2 * (8 * ks + 2 * d + 1) + (c >> 1)
                A(f"v_perm_b32 v{FR0+4*c+d}, v{hi}, v{lo}, {'s36' if c & 1 else 's35'}")
        for c in range(4):
            cc = "0" if ks == 0 else f"v[{AC0+4*c}:{AC0+4*c+3}]"
            A(f"v_mfma_f32_16x16x32_bf16 v[{AC0+4*c}:{AC0+4*c+3}], v[{X0+4*ks}:{X0+4*ks+3}], v[{FR0+4*c}:{FR0+4*c+3}], {cc}")
    A("s_waitcnt vmcnt(0)")
    stamp(2)
    if hstop == 1:
        A("s_branch L_h_stop")
    A("v_add_u32 v4, 1, v4")
    tags("v4")
    pack4(12, [AC0, AC0 + 4, AC0 + 8, AC0 + 12])
    A("s_mov_b32 exec_lo, 0xffff")
    A("s_mov_b32 exec_hi, 0xffff")
    A("buffer_store_dwordx4 v[12:15], v8, s[44:47], s62 offen sc1")
    A("s_mov_b64 exec, -1")
    stamp(3)
    if hstop == 2:
        A("s_branch L_h_stop")
    A("s_branch L_h_b")

    A.label("L_h_idle0", pad=False)
    A("s_cmp_lg_u32 s3, 3")
    A("s_cbranch_scc1 L_h_noinit")
    A("v_lshlrev_b32 v9, 3, v1")
    A("v_mov_b32 v10, 0")
    A("v_mov_b32 v11, 0")
    A(f"ds_write_b64 v9, v[10:11] offset:{MLL}")
    A("s_waitcnt lgkmcnt(0)")
    A.label("L_h_noinit", pad=False)
    A("s_barrier")
    if hstop in (1, 2):
        A("s_branch L_h_stop")
    if prefetch:
        A("s_cmp_lg_u32 s3, 3")
        A("s_cbranch_scc1 L_h_nopf")
        A("s_getpc_b64 s[52:53]")
        A.raw("L_pc:")
        A(f"s_sub_u32 s52, s52, L_pc-{NAME}_kernel")
        A("s_subb_u32 s53, s53, 0")
        A(f"s_mov_b32 s54, L_code_end-{NAME}_kernel")
        A("v_lshlrev_b32 v9, 12, v1")
        A("s_lshr_b32 s56, s2, 3")
        A("s_lshl_b32 s56, s56, 7")
        A("s_mov_b64 exec, 0xff")
        A("buffer_load_dword v200, v9, s[52:55], s56 offen")
        A("s_mov_b64 exec, -1")
        A.label("L_h_nopf", pad=False)
    A("s_cmp_lg_u32 s3, 2")
    A("s_cbranch_scc1 L_h_b")
    A("s_mov_b32 s52, s22")
    A("s_mov_b32 s53, s23")
    A("s_movk_i32 s54, 1280")
    A("v_and_b32 v9, 31, v1")
    A("v_lshlrev_b32 v9, 3, v9")
    A("v_lshrrev_b32 v10, 5, v1")
    A("v_mul_u32_u24 v11, 1280, v10")
    A("v_add_u32 v11, v11, v9")
    for t in range(5):
        A(f"buffer_load_dwordx2 v[{200+2*t}:{201+2*t}], v11, s[48:51], 0 offen offset:{256*t}")
        A(f"buffer_load_dwordx2 v[{210+2*t}:{211+2*t}], v9, s[52:55], 0 offen offset:{256*t}")
    A("v_mov_b32 v12, 0")
    A("s_waitcnt vmcnt(0)")
    for t in range(10):
        A(f"v_lshlrev_b32 v220, 16, v{200+t}")
        A(f"v_lshlrev_b32 v221, 16, v{210+t}")
        A(f"v_and_b32 v222, 0xffff0000, v{200+t}")
        A(f"v_and_b32 v223, 0xffff0000, v{210+t}")
        A("v_mul_f32 v220, v220, v221")
        A("v_mul_f32 v222, v222, v223")
        round_pair(220, 222, 224)
        A("v_add_f32 v12, v12, v220")
        A("v_add_f32 v12, v12, v222")
    allreduce("v_add_f32", [12], [220], (1, 2, 8, 4, 16))
    A("v_cvt_pk_bf16_f32 v12, v12, v12")
    A("v_and_b32 v12, 0xffff0000, v12")
    A(f"v_mul_f32 v12, 0x{LOG2E ^ 0x80000000:08x}, v12")
    A("v_exp_f32 v12, v12")
    A("v_add_f32 v12, 1.0, v12")
    A("v_rcp_f32 v12, v12")
    A("v_cvt_pk_bf16_f32 v12, v12, v12")
    A("v_and_b32 v12, 0xffff0000, v12")
    A("v_lshlrev_b32 v10, 2, v10")
    A(f"ds_write_b32 v10, v12 offset:{GF+4}")
    A("v_mov_b32 v11, 1")
    A("s_waitcnt lgkmcnt(0)")
    A(f"ds_write_b32 v7, v11 offset:{GF}")

    A.label("L_h_b")
    if hstop == 3:
        A("s_branch L_h_stop")
    A("s_lshl_b32 s56, s30, 3")
    A("s_add_u32 s72, s56, s38")
    A(f"s_mul_i32 s56, s72, {16*1280}")
    A("s_add_u32 s40, s12, s56")
    A("s_addc_u32 s41, s13, 0")
    A(f"s_mov_b32 s42, {16*1280}")
    A(f"s_mul_i32 s56, s2, {8*1280}")
    A("s_add_u32 s52, s20, s56")
    A("s_addc_u32 s53, s21, 0")
    A("s_cmp_lt_u32 s2, 216")
    A(f"s_cselect_b32 s54, {8*1280}, 0")
    A("s_cselect_b32 s52, s52, s20")
    A("s_cselect_b32 s53, s53, s21")
    A("s_lshl_b32 s56, s3, 8")
    A("s_lshl_b32 s58, s3, 6")
    A("s_add_u32 s58, s58, 1024")
    A("v_mul_u32_u24 v8, 5120, v3")
    A("v_lshl_add_u32 v5, v2, 4, v8")
    A("v_lshl_add_u32 v6, v2, 2, v8")
    A("v_mul_u32_u24 v8, 2560, v3")
    A("v_lshl_add_u32 v9, v2, 4, v8")
    A("v_lshl_add_u32 v10, v2, 2, v8")
    for e in range(4):
        A(f"buffer_load_dwordx4 v[{16+4*e}:{19+4*e}], v5, s[40:43], s56 offen offset:{1280*e} {wpol}")
        A(f"buffer_load_dword v{32+e}, v6, s[40:43], s58 offen offset:{1280*e} {wpol}")
    for e in range(2):
        A(f"buffer_load_dwordx4 v[{36+4*e}:{39+4*e}], v9, s[52:55], s56 offen offset:{1280*e} {wpol}")
        A(f"buffer_load_dword v{44+e}, v10, s[52:55], s58 offen offset:{1280*e} {wpol}")
    A("s_cmp_lg_u32 s3, 0")
    A("s_cbranch_scc1 L_h_noq")
    A("v_lshlrev_b32 v12, 4, v1")
    A("s_lshl_b32 s56, s33, 11")
    A(f"s_add_u32 s56, s56, {QP}")
    QL = 148
    poll4("L_pq", [QL, QL + 4], "v12", "s56", [0, 1024], 10, sleep)
    for n in range(8):
        A(f"v_and_b32 v{QL+n}, 0xfffffe00, v{QL+n}")
    for n in range(4):
        A(f"v_permlane32_swap_b32 v{QL+n}, v{QL+n+4}")
    for n in range(4):
        A(f"v_add_f32 v{QL+n}, v{QL+n}, v{QL+n+4}")
    for n in range(2):
        A(f"v_permlane16_swap_b32 v{QL+n}, v{QL+n+2}")
    for n in range(2):
        A(f"v_add_f32 v{QL+n}, v{QL+n}, v{QL+n+2}")
    A(f"v_cvt_pk_bf16_f32 v10, v{QL}, v{QL+1}")
    A("v_lshlrev_b32 v9, 4, v2")
    A("v_lshl_add_u32 v9, v3, 2, v9")
    A(f"ds_write_b32 v9, v10 offset:{Q_LDS}")
    A("v_mov_b32 v10, 1")
    A("v_mov_b32 v11, v4")
    A("s_waitcnt lgkmcnt(0)")
    A(f"ds_write_b64 v7, v[10:11] offset:{QF}")
    stamp(6)
    A.label("L_h_noq", pad=False)

    FO, FD = 48, 68
    lds_poll("L_pt", [f"ds_read_b64 v[10:11], v7 offset:{QF}"], 10, 2)
    A("v_mov_b32 v4, v11")
    tags("v11")
    A("v_lshrrev_b32 v9, 5, v1")
    A("v_lshlrev_b32 v9, 2, v9")
    lds_poll("L_pg", [f"ds_read_b32 v10, v7 offset:{GF}", f"ds_read_b32 v78, v9 offset:{GF+4}"], 10, 2)
    A("v_sub_f32 v79, 1.0, v78")
    A("v_cvt_pk_bf16_f32 v79, v79, v79")
    A("v_and_b32 v79, 0xffff0000, v79")
    A("s_waitcnt vmcnt(0)")
    for c in range(8):
        for d in range(2):
            A(f"v_perm_b32 v{FO+2*c+d}, v{16+4*(2*d+1)+(c>>1)}, v{16+4*(2*d)+(c>>1)}, {'s36' if c & 1 else 's35'}")
        A(f"v_perm_b32 v{FD+c}, v{40+(c>>1)}, v{36+(c>>1)}, {'s36' if c & 1 else 's35'}")
    for cc in range(2):
        for d in range(2):
            A(f"v_perm_b32 v{FO+16+2*cc+d}, v{32+2*d+1}, v{32+2*d}, {'s36' if cc else 's35'}")
        A(f"v_perm_b32 v{FD+8+cc}, v45, v44, {'s36' if cc else 's35'}")
    Z = 140
    if hstop == 4:
        A("s_branch L_h_stop")
    for k in range(6):
        A(f"v_mov_b32 v{Z+k}, 0")
    A("v_and_b32 v10, 1, v3")
    A("v_cmp_eq_u32 s[68:69], 1, v10")
    A("s_cmp_ge_u32 s2, 216")
    A("s_cbranch_scc1 L_h_nof2")
    A("v_and_b32 v9, 7, v2")
    A("v_lshlrev_b32 v9, 9, v9")
    A("v_lshrrev_b32 v10, 3, v2")
    A("v_lshl_add_u32 v9, v10, 8, v9")
    A("v_lshrrev_b32 v10, 1, v3")
    A("v_lshl_add_u32 v9, v10, 4, v9")
    A("s_lshr_b32 s56, s2, 3")
    A("s_lshl_b32 s56, s56, 12")
    A("s_lshl_b32 s58, s34, 5")
    A("s_add_u32 s56, s56, s58")
    A(f"s_add_u32 s56, s56, {FP}")
    poll4("L_pf", [84], "v9", "s56", [0], 10, 4)
    val, tmp, U = [80, 82], [81, 83], [84, 85]
    A("v_cndmask_b32 v80, v84, v86, s[68:69]")
    A("v_cndmask_b32 v82, v85, v87, s[68:69]")
    for r in val:
        A(f"v_and_b32 v{r}, 0xfffffe00, v{r}")
    allreduce("v_add_f32", val, None, (1, 2))
    round_pair(80, 82, 81)
    A("s_mov_b32 s56, 0x3d372713")
    A("s_mov_b32 s57, 0xc0135761")
    for n in range(2):
        A(f"v_mov_b32_dpp v{U[n]}, v{val[n]} row_shl:4 {DPP} bound_ctrl:0")
    for n in range(2):
        A(f"v_mul_f32 v{tmp[n]}, v{val[n]}, v{val[n]}")
    for n in range(2):
        A(f"v_mul_f32 v{tmp[n]}, v{tmp[n]}, v{val[n]}")
    for n in range(2):
        A(f"v_fma_f32 v{tmp[n]}, v{tmp[n]}, s56, v{val[n]}")
    for n in range(2):
        A(f"v_mul_f32 v{tmp[n]}, s57, v{tmp[n]}")
    for n in range(2):
        A(f"v_exp_f32 v{tmp[n]}, v{tmp[n]}")
    for n in range(2):
        A(f"v_add_f32 v{tmp[n]}, 1.0, v{tmp[n]}")
    for n in range(2):
        A(f"v_rcp_f32 v{tmp[n]}, v{tmp[n]}")
    for n in range(2):
        A(f"v_mul_f32 v{val[n]}, v{val[n]}, v{tmp[n]}")
    round_pair(80, 82, 81)
    for n in range(2):
        A(f"v_mul_f32 v{val[n]}, v{val[n]}, v{U[n]}")
    A("v_cvt_pk_bf16_f32 v96, v80, v82")
    A("v_mov_b32 v97, 0")
    A("v_mov_b32 v98, 0")
    A("v_mov_b32_dpp v96, v96 row_shr:4 row_mask:0xf bank_mask:0xa")
    A("v_mov_b32 v99, v96")
    for c in range(10):
        a = "v[98:99]" if c & 1 else "v[96:97]"
        f = FD + (c & ~1)
        A(f"v_mfma_f32_16x16x16_bf16 v[{100+4*c}:{103+4*c}], {a}, v[{f}:{f+1}], 0")
    for c in range(4):
        A(f"v_cndmask_b32 v{Z+c}, v{100+4*c}, v{100+4*(c+4)}, s[68:69]")
    for c in range(4):
        A(f"v_mul_f32 v{Z+c}, v{Z+c}, v79")
    A(f"v_mul_f32 v{Z+4}, v132, v79")
    A(f"v_mul_f32 v{Z+5}, v136, v79")
    A.label("L_h_nof2")
    if stamps:
        A("s_cmp_eq_u32 s3, 0")
        A("s_cbranch_scc1 L_st6")
        stamp(6)
        A.label("L_st6", pad=False)
    if hstop == 5:
        A("s_branch L_h_stop")
    A("s_cmp_lg_u32 s3, 0")
    A("s_cbranch_scc1 L_h_noml")
    A("v_and_b32 v8, 3, v1")
    A("v_lshlrev_b32 v8, 4, v8")
    lds_poll("L_pl", [f"ds_read_b128 v[150:153], v8 offset:{MLL}"], 152, 4)
    A(f"s_mov_b32 s58, 0x{LOG2E:08x}")

    def stats(mr, lr, M, Lr, t):
        A(f"v_mov_b32 v{M}, v{mr}")
        allreduce("v_max_f32", [M], None, (1, 2))
        A(f"v_sub_f32 v{t}, v{mr}, v{M}")
        A(f"v_mul_f32 v{t}, s58, v{t}")
        A(f"v_exp_f32 v{t}, v{t}")
        A(f"v_mul_f32 v{Lr}, v{lr}, v{t}")
        allreduce("v_add_f32", [Lr], None, (1, 2))

    stats(150, 151, 154, 156, 158)
    A("v_add_u32 v156, 0x80, v156")
    A("v_bfi_b32 v154, s37, v4, v154")
    A("v_bfi_b32 v156, s37, v4, v156")
    A("v_mov_b32 v155, v4")
    A("v_mov_b32 v157, v4")
    A("s_lshl_b32 s56, s33, 9")
    A(f"s_add_u32 s56, s56, {ML}")
    A("s_lshl_b32 s59, s32, 7")
    A("v_mov_b32 v9, s59")
    A("v_lshlrev_b32 v11, 3, v8")
    A("s_mov_b64 exec, 1")
    A("buffer_store_dwordx4 v[154:157], v9, s[44:47], s56 offen sc1")
    A("s_mov_b64 exec, -1")
    if gate >= 0 and row:
        A("v_and_b32 v12, 7, v1")
        A("v_lshlrev_b32 v12, 9, v12")
        A("s_andn2_b32 s59, s56, 0xe00")
        A("s_lshl_b32 s63, s32, 7")
        A("s_add_u32 s59, s59, s63")
        A(f"s_mov_b32 s57, {SPIN}")
        A.label("L_pm")
        A("buffer_load_dwordx4 v[158:161], v11, s[44:47], s56 offen sc1")
        A("buffer_load_dwordx4 v[168:171], v12, s[44:47], s59 offen sc1")
        A("s_waitcnt vmcnt(0)")
        check([158, 168], 10, 162)
        A("v_cmp_ne_u32 vcc, 0, v10")
        A("s_cbranch_vccz L_pm_ok")
        A("s_sleep 4")
        A("s_sub_u32 s57, s57, 1")
        A("s_cbranch_scc0 L_pm")
        A.label("L_pm_ok", pad=False)
    else:
        poll("L_pm", [158], "v11", "s56", [0], 10, 162, slp=8)
    A("v_and_b32 v158, 0xffffff00, v158")
    A("v_and_b32 v160, 0xffffff00, v160")
    stats(158, 160, 159, 161, 162)
    A("v_rcp_f32 v161, v161")
    A("v_sub_f32 v162, v150, v159")
    A("v_mul_f32 v162, s58, v162")
    A("v_exp_f32 v162, v162")
    A("v_mov_b32 v163, 1")
    A("v_mul_f32 v162, v162, v161")
    A("v_lshrrev_b32 v8, 1, v8")
    A(f"ds_write_b64 v8, v[162:163] offset:{SCL}")
    A.label("L_h_noml")
    if hstop == 6:
        A("s_branch L_h_stop")
    A("v_lshrrev_b32 v8, 3, v2")
    A("v_lshlrev_b32 v8, 16, v8")
    A("v_and_b32 v9, 3, v2")
    A("v_lshl_add_u32 v8, v9, 9, v8")
    A("v_lshl_add_u32 v146, v3, 4, v8")
    A("s_lshl_b32 s73, s30, 11")
    A("s_lshl_b32 s56, s38, 6")
    A("s_add_u32 s73, s73, s56")
    A(f"s_add_u32 s73, s73, {REC}")
    A("s_lshl_b32 s75, s33, 11")
    A("s_lshl_b32 s56, s32, 9")
    A("s_add_u32 s75, s75, s56")
    A(f"s_add_u32 s75, s75, {REC}")
    A("v_lshlrev_b32 v147, 4, v1")
    A("s_lshl_b32 s56, s34, 5")
    A("s_lshr_b32 s57, s2, 3")
    A("s_add_u32 s56, s56, s57")
    A("s_mul_i32 s56, s56, 5120")
    A("s_mul_i32 s57, s3, 1280")
    A("s_add_u32 s56, s56, s57")
    A(f"s_add_u32 s74, s56, {YB}")
    A("v_and_b32 v10, 4, v2")
    A("v_cmp_eq_u32 s[70:71], 0, v10")
    red_setup("s3", "v1")
    A("s_mul_i32 s56, s2, 205")
    A("s_lshr_b32 s56, s56, 11")
    A("s_mul_i32 s57, s56, 10")
    A("s_sub_u32 s57, s2, s57")
    A("s_bfe_u32 s58, s57, 0x10002")
    A("s_mul_i32 s58, s58, 1280")
    A("s_lshl_b32 s59, s56, 8")
    A("s_add_u32 s58, s58, s59")
    A("s_and_b32 s59, s57, 1")
    A("s_lshl_b32 s59, s59, 7")
    A("s_add_u32 s58, s58, s59")
    A("s_bfe_u32 s59, s57, 0x10001")
    A("s_lshl_b32 s59, s59, 3")
    A("s_add_u32 s78, s58, s59")
    A("s_lshl_b32 s58, s56, 6")
    A("s_and_b32 s59, s57, 1")
    A("s_lshl_b32 s59, s59, 5")
    A("s_add_u32 s58, s58, s59")
    A("s_add_u32 s58, s58, 1024")
    A("s_cmp_ge_u32 s57, 8")
    A("s_cselect_b32 s78, s58, s78")
    A("s_cselect_b32 s58, 2, 4")
    A("s_cselect_b32 s59, 1280, 4")
    A("v_and_b32 v8, 7, v1")
    A("v_lshlrev_b32 v165, s58, v8")
    A("v_lshrrev_b32 v8, 5, v1")
    A("v_mul_lo_u32 v8, v8, s59")
    A("v_add_u32 v165, v165, v8")
    A("s_mov_b32 s52, s24")
    A("s_mov_b32 s53, s25")
    A("s_movk_i32 s54, 2560")
    A("s_mov_b32 s77, s3")
    stamp(4)
    A("s_barrier")
    A("s_cmp_lg_u32 s3, 0")
    A("s_cbranch_scc1 L_h_norec")
    for w in range(4):
        A(f"ds_read_b128 v[{16+4*w}:{19+4*w}], v147 offset:{OL+512*w}")
    A("s_waitcnt lgkmcnt(2)")
    for k in range(4):
        A(f"v_add_f32 v{16+k}, v{16+k}, v{20+k}")
    A("s_waitcnt lgkmcnt(0)")
    for k in range(4):
        A(f"v_add_f32 v{24+k}, v{24+k}, v{28+k}")
    for k in range(4):
        A(f"v_add_f32 v{16+k}, v{16+k}, v{24+k}")
    pack4(16, [16, 17, 18, 19])
    A("s_mov_b32 exec_hi, 0")
    A("buffer_store_dwordx4 v[16:19], v147, s[44:47], s75 offen sc1")
    A("s_mov_b64 exec, -1")
    A.label("L_h_norec", pad=False)
    A(f"s_mov_b32 s57, {SPIN}")
    A("buffer_load_dwordx4 v[24:27], v146, s[44:47], s73 offen sc1")
    A.label("L_pr")
    if rsleep:
        A(f"s_sleep {rsleep}")
    A("buffer_load_dwordx4 v[24:27], v146, s[44:47], s73 offen sc1")
    A("s_mov_b64 exec, -1")
    A("s_waitcnt vmcnt(1)")
    check4([24], 10)
    A("v_cmp_ne_u32 vcc, 0, v10")
    A("s_sub_u32 s57, s57, 1")
    A("s_cbranch_scc1 L_pr_ok")
    A("s_and_b64 exec, vcc, exec")
    A("s_cbranch_scc1 L_pr")
    A("s_mov_b64 exec, -1")
    A.label("L_pr_ok", pad=False)
    stamp(1)
    for k in range(4):
        A(f"v_and_b32 v{20+k}, 0xfffffe00, v{24+k}")
    allreduce("v_add_f32", [20, 21, 22, 23], None, (1, 2))
    A("v_cvt_pk_bf16_f32 v40, v20, v21")
    A("v_cvt_pk_bf16_f32 v41, v22, v23")
    A("v_cndmask_b32 v32, 0, v40, s[70:71]")
    A("v_cndmask_b32 v33, 0, v41, s[70:71]")
    A("v_cndmask_b32 v34, v40, 0, s[70:71]")
    A("v_cndmask_b32 v35, v41, 0, s[70:71]")
    for c in (0, 1, 2, 3, 8, 9, 4, 5, 6, 7):
        acc = 100 + 4 * (c & 3) if c < 8 else 116 + 4 * (c - 8)
        a = "v[34:35]" if 4 <= c < 8 else "v[32:33]"
        cc = f"v[{acc}:{acc+3}]" if 4 <= c < 8 else "0"
        A(f"v_mfma_f32_16x16x16_bf16 v[{acc}:{acc+3}], {a}, v[{FO+2*c}:{FO+2*c+1}], {cc}")
    A(f"v_fma_f32 v36, v116, v78, v{Z+4}")
    A(f"v_fma_f32 v37, v120, v78, v{Z+5}")
    A("v_permlane32_swap_b32 v36, v38")
    A("v_permlane32_swap_b32 v37, v39")
    pack4(36, [36, 37, 38, 39])
    for c in range(4):
        A(f"v_fma_f32 v{8+c}, v{100+4*c}, v78, v{Z+c}")
    pack4(8, [8, 9, 10, 11])
    A("buffer_store_dwordx4 v[8:11], v147, s[44:47], s74 offen sc1")
    A("s_mov_b64 exec, 0xffff")
    A("buffer_store_dwordx4 v[36:39], v147, s[44:47], s74 offen offset:1024 sc1")
    A("s_mov_b64 exec, -1")
    stamp(5)
    A("s_cmp_ge_u32 s2, 40")
    A("s_cbranch_scc1 L_h_done")
    A.label("L_red", pad=False)
    SA = 204
    for i in range(1, 4):
        A(f"s_add_u32 s{60+i}, s76, {8*5120*i}")
    A("s_mov_b32 s60, s76")
    A(f"s_mov_b32 s57, {SPIN}")
    for i in range(4):
        A(f"buffer_load_dwordx4 v[{SA+4*i}:{SA+4*i+3}], v200, s[44:47], s{60+i} offen sc1")
    A("s_mov_b32 s52, s24")
    A("s_mov_b32 s53, s25")
    A("s_movk_i32 s54, 2560")
    A("s_waitcnt vmcnt(0)")
    A("s_branch L_y_c")
    A.label("L_y1", pad=False)
    A(f"s_sleep {hsleep}")
    A("s_mov_b64 exec, 0xff")
    A(f"buffer_load_dwordx4 v[{SA}:{SA+3}], v200, s[44:47], s60 offen sc1")
    A("s_waitcnt vmcnt(0)")
    check4([SA], 236)
    A("v_cmp_ne_u32 vcc, 0, v236")
    A("s_sub_u32 s57, s57, 1")
    A("s_cbranch_scc1 L_y2")
    A("s_cbranch_vccnz L_y1")
    A.label("L_y2", pad=False)

    def yround():
        for i in range(4):
            A(f"s_or_b64 exec, s[{64+2*i}:{65+2*i}], 1")
            A(f"buffer_load_dwordx4 v[{SA+4*i}:{SA+4*i+3}], v200, s[44:47], s{60+i} offen sc1")
        A("s_mov_b64 exec, -1")

    if ypipe:
        yround()
        A.label("L_y2l", pad=False)
        if psleep:
            A(f"s_sleep {psleep}")
    yround()
    A(f"s_waitcnt vmcnt({4 if ypipe else 0})")

    def ycheck():
        for i in range(4):
            check4([SA + 4 * i], 236)
            A(f"v_cmp_ne_u32 s[{64+2*i}:{65+2*i}], 0, v236")
        A("s_or_b64 s[58:59], s[64:65], s[66:67]")
        A("s_or_b64 s[72:73], s[68:69], s[70:71]")
        A("s_or_b64 s[58:59], s[58:59], s[72:73]")
        A("s_cbranch_scc0 L_y_ok")

    ycheck()
    A("s_sub_u32 s57, s57, 1")
    A(f"s_cbranch_scc0 {'L_y2l' if ypipe else 'L_y2'}")
    A("s_branch L_y_ok")
    A.label("L_y_c", pad=False)
    ycheck()
    A("s_and_b32 s58, s64, 0xff")
    A("s_cbranch_scc1 L_y1")
    A("s_branch L_y2")
    A.label("L_y_ok", pad=False)
    for n in range(16):
        A(f"v_and_b32 v{220+n}, 0xfffffe00, v{SA+n}")
    for k in range(4):
        A(f"v_add_f32 v{220+k}, v{220+k}, v{224+k}")
        A(f"v_add_f32 v{228+k}, v{228+k}, v{232+k}")
    for k in range(4):
        A(f"v_add_f32 v{220+k}, v{220+k}, v{228+k}")
    allreduce("v_add_f32", [220, 221, 222, 223], None, (8,))
    A("v_permlane16_swap_b32 v220, v221")
    A("v_permlane16_swap_b32 v222, v223")
    A("v_add_f32 v220, v220, v221")
    A("v_add_f32 v222, v222, v223")
    A("v_permlane32_swap_b32 v220, v222")
    A("v_add_f32 v220, v220, v222")
    A(f"ds_write_b32 v201, v220 offset:{RED}")
    A("s_waitcnt lgkmcnt(0)")
    A("s_barrier")
    A("s_cmp_lg_u32 s77, 0")
    A("s_cbranch_scc1 L_h_done")
    for w in range(1, 8):
        A(f"ds_read_b32 v{220+w}, v201 offset:{RED+128*w}")
    A("s_waitcnt lgkmcnt(0)")
    for step in (1, 2, 4):
        for i in range(0, 8, 2 * step):
            A(f"v_add_f32 v{220+i}, v{220+i}, v{220+i+step}")
    A("v_mov_b32 v221, v220")
    A("v_permlane16_swap_b32 v220, v221")
    A("v_cvt_pk_bf16_f32 v10, v220, v221")
    A("s_mov_b32 exec_lo, 0xff")
    A("s_mov_b32 exec_hi, 0xff")
    A("buffer_store_dword v10, v165, s[52:55], s78 offen")
    A("s_cmp_lg_u32 s2, 0")
    A("s_cbranch_scc1 L_h_done")
    A("s_mov_b64 exec, 1")
    A(f"buffer_store_dword v4, v7, s[44:47], 0 offen offset:{EPOCH} sc1")
    if hstop:
        A("s_branch L_h_done")
        A.label("L_h_stop")
        A("s_barrier")
    A.label("L_h_done", pad=False)
    if stamps:
        A("s_mov_b64 exec, -1")
        A("s_waitcnt vmcnt(0)")
        stamp(7)
        stamp_out("s3")
    A("s_endpgm")

    A.raw(".p2align 6")
    A.label("L_stream", pad=False)
    A("s_sub_u32 s3, s3, 4")
    if sprio:
        A(f"s_setprio {sprio}")
    A("s_lshl_b32 s56, s33, 2")
    A("s_add_u32 s56, s56, s32")
    A("s_lshl_b32 s56, s56, 19")
    A("s_lshl_b32 s57, s3, 12")
    A("v_lshlrev_b32 v4, 4, v1")
    A("v_add_u32 v1, s57, v4")
    A("s_mov_b32 s42, 0x80000")
    if rot == 1:
        A("s_lshr_b32 s39, s2, 3")
    elif rot == 2:
        A("s_lshr_b32 s39, s2, 3")
        A("s_lshl_b32 s62, s34, 2")
        A("s_add_u32 s39, s39, s62")
    elif rot == 3:
        A("s_lshl_b32 s39, s34, 2")
    elif rot == 4:
        A("s_mul_i32 s39, s2, 0x9E3779B1")
        A("s_lshr_b32 s39, s39, 27")
    if rot:
        A("s_and_b32 s39, s39, 31")
        A("s_lshl_b32 s39, s39, 14")
    A("s_waitcnt lgkmcnt(0)")
    A("s_add_u32 s40, s6, s56")
    A("s_addc_u32 s41, s7, 0")
    A("s_add_u32 s48, s8, s56")
    A("s_addc_u32 s49, s9, 0")
    RING, SC, AO = 64, 8, 16

    def issue2(pc, hf, sreg):
        for t in (2 * hf, 2 * hf + 1):
            r = RING + 16 * pc + 4 * t
            A(f"buffer_load_dwordx4 v[{r}:{r+3}], v1, s[40:43], {sreg} offen offset:{1024*t} {pol}")

    for pc in range(8):
        A(f"s_mov_b32 s58, {16384*pc}")
        for hf in range(2):
            if 2 * pc + hf == early:
                A("s_barrier")
            if 4 * pc + 2 * hf >= P0:
                A(f"s_waitcnt vmcnt({P0-2})")
            issue2(pc, hf, "s58")
    PARK = 192
    A("s_mov_b32 s50, 0x80000")
    for pk in range(park):
        A(f"s_waitcnt vmcnt({P-4})")
        if rot:
            A(f"s_add_u32 s58, s39, {16384*(32-park+pk)}")
            A("s_and_b32 s58, s58, 0x7ffff")
        else:
            A(f"s_mov_b32 s58, {16384*(32-park+pk)}")
        for t in range(4):
            r = PARK + 16 * pk + 4 * t
            A(f"buffer_load_dwordx4 v[{r}:{r+3}], v1, s[48:51], s58 offen offset:{1024*t} {pol}")
    A("s_mov_b32 s44, s28")
    A("s_mov_b32 s45, s29")
    A("v_and_b32 v4, 2, v0")
    A("v_cmp_ne_u32 s[80:81], 0, v4")
    A("v_and_b32 v4, 1, v0")
    A("v_cmp_ne_u32 s[82:83], 0, v4")
    for r in range(8):
        A(f"v_mov_b32 v{AO+r}, 0")
    A("v_lshlrev_b32 v40, 5, v2")
    A("v_lshl_add_u32 v40, v3, 3, v40")
    A("s_lshl_b32 s56, s3, 9")
    A("v_add_u32 v40, s56, v40")
    A("s_lshl_b32 s56, s3, 3")
    A("v_mov_b32 v41, s56")
    A("v_lshlrev_b32 v24, 4, v2")
    A("v_mov_b32 v25, 0")
    if not (noq or noh or hstop):
        lds_poll("L_ps", [f"ds_read_b64 v[44:45], v25 offset:{QF}"], 44, 1)
    A(f"ds_read_b128 v[4:7], v24 offset:{Q_LDS}")
    stamp(1)
    A("s_add_u32 s77, s3, 4")
    A("v_and_b32 v48, 63, v0")
    red_setup("s77", "v48")
    tags("v45")
    A("s_mov_b32 s59, 0")
    if rot:
        A(f"s_add_u32 s60, s39, {8*16384}")
    else:
        A(f"s_mov_b32 s60, {8*16384}")
    A("s_waitcnt lgkmcnt(0)")

    def pace_issue(pc, hf, vf=False):
        if hf == 0:
            A(f"s_add_u32 s58, s60, {16384*pc}")
        if vf and fast_it < 3:
            A(f"s_cmp_ge_u32 s59, {fast_it}")
            A(f"s_cbranch_scc1 L_vf{pc}_{hf}")
            A(f"s_waitcnt vmcnt({P-2})")
            A.label(f"L_vf{pc}_{hf}", pad=False)
            A(f"s_waitcnt vmcnt({PF-2})")
        else:
            A(f"s_waitcnt vmcnt({P-2})")
        issue2(pc, hf, "s58")

    A.raw(".p2align 6")
    A.label("L_kloop")
    A("s_cmp_eq_u32 s59, 3")
    A("s_cselect_b32 s40, s48, s40")
    A("s_cselect_b32 s41, s49, s41")
    A(f"s_cselect_b32 s60, {'s39' if rot else '0'}, s60")
    for r in range(6):
        A(f"v_mov_b32 v{SC+r}, v{SC+r+2}")
    BR, CR = 32, 36
    for pc in range(8):
        a = 24 + 4 * (pc & 1)
        if P > 28:
            A("s_waitcnt vmcnt(28)")
        for d in range(4):
            for t in range(4):
                r = RING + 16 * pc + 4 * t + d
                if d == 0:
                    A(f"v_dot2_f32_bf16 v{a+t}, v{r}, v{4+d}, 0")
                else:
                    A(f"v_dot2c_f32_bf16 v{a+t}, v{r}, v{4+d}")
        pace_issue(pc, 0)
        A(f"v_add_f32_dpp v{a}, v{a}, v{a} row_ror:8 row_mask:0xf bank_mask:0x3")
        A(f"v_add_f32_dpp v{a+2}, v{a+2}, v{a+2} row_ror:8 row_mask:0xf bank_mask:0x3")
        A(f"v_add_f32_dpp v{a}, v{a+1}, v{a+1} row_ror:8 row_mask:0xf bank_mask:0xc")
        A(f"v_add_f32_dpp v{a+2}, v{a+3}, v{a+3} row_ror:8 row_mask:0xf bank_mask:0xc")
        bq = BR + (pc & 1)
        A(f"v_add_f32_dpp v{bq}, v{a}, v{a} row_shl:4 row_mask:0xf bank_mask:0x5")
        A(f"v_add_f32_dpp v{bq}, v{a+2}, v{a+2} row_shr:4 row_mask:0xf bank_mask:0xa")
        if pc & 1:
            cq = CR + ((pc >> 1) & 1)
            A(f"v_cndmask_b32 v34, v{BR+1}, v{BR}, s[80:81]")
            A(f"v_cndmask_b32 v35, v{BR}, v{BR+1}, s[80:81]")
            A(f"v_add_f32_dpp v{cq}, v34, v35 quad_perm:[2,3,0,1] {DPP}")
        if (pc & 3) == 3:
            A(f"v_cndmask_b32 v34, v{CR+1}, v{CR}, s[82:83]")
            A(f"v_cndmask_b32 v35, v{CR}, v{CR+1}, s[82:83]")
            A(f"v_add_f32_dpp v{SC+6+(pc>>2)}, v34, v35 quad_perm:[1,0,3,2] {DPP}")
        pace_issue(pc, 1)
    A(f"s_add_u32 s60, s60, {8*16384}")
    A("s_add_u32 s59, s59, 1")
    if stamps:
        A("s_cmp_lg_u32 s59, 1")
        A("s_cbranch_scc1 L_st4")
        stamp(4)
        A.label("L_st4", pad=False)
    A("s_cmp_lt_u32 s59, 4")
    A("s_cbranch_scc1 L_kloop")
    stamp(2)
    A(f"s_mov_b32 s56, 0x{SCALE:08x}")
    A(f"s_mov_b32 s57, 0x{LOG2E:08x}")
    for rnd in range(2):
        for n in range(0, 8, 2):
            A(f"v_cvt_pk_bf16_f32 v{24+n}, v{SC+n}, v{SC+n+1}")
        for n in range(0, 8, 2):
            A(f"v_lshlrev_b32 v{SC+n}, 16, v{24+n}")
            A(f"v_and_b32 v{SC+n+1}, 0xffff0000, v{24+n}")
        if rnd == 0:
            for n in range(8):
                A(f"v_mul_f32 v{SC+n}, s56, v{SC+n}")
    A(f"v_max3_f32 v32, v{SC}, v{SC+1}, v{SC+2}")
    A(f"v_max3_f32 v33, v{SC+3}, v{SC+4}, v{SC+5}")
    A(f"v_max3_f32 v32, v32, v{SC+6}, v{SC+7}")
    A("v_max_f32 v32, v32, v33")
    allreduce("v_max_f32", [32], [33], (1, 2, 4, 8, 16, 32))
    for n in range(8):
        A(f"v_sub_f32 v{SC+n}, v{SC+n}, v32")
    for n in range(8):
        A(f"v_mul_f32 v{SC+n}, s57, v{SC+n}")
    for n in range(8):
        A(f"v_exp_f32 v{SC+n}, v{SC+n}")
    for n in range(0, 8, 2):
        A(f"v_add_f32 v{24+n}, v{SC+n}, v{SC+n+1}")
    A("v_add_f32 v24, v24, v26")
    A("v_add_f32 v28, v28, v30")
    A("v_add_f32 v33, v24, v28")
    for n in range(8):
        A(f"v_mov_b32_dpp v{24+n}, v{SC+n} row_ror:8 {DPP}")
    for n in range(8):
        A(f"v_cvt_pk_bf16_f32 v{SC+n}, v{SC+n}, v{24+n}")
    allreduce("v_add_f32", [33], [36], (1, 2, 8, 4, 16, 32))
    A("v_mov_b32 v34, 1")
    A("v_mov_b32 v35, 0")
    A("s_lshl_b32 s56, s3, 4")
    A("v_mov_b32 v36, s56")
    A("s_mov_b64 exec, 1")
    A(f"ds_write_b128 v36, v[32:35] offset:{MLL}")
    A("s_mov_b64 exec, -1")
    A("s_mov_b32 s59, 0")

    def vbody(last):
        for pc in range(8):
            for pr in range(2):
                if last:
                    A(f"s_waitcnt vmcnt({30-4*pc-2*pr})")
                t0 = 24 + 8 * pr
                ra = RING + 16 * pc + 8 * pr
                rb = ra + 4
                for q in range(4):
                    A(f"v_perm_b32 v{t0+2*q}, v{rb+q}, v{ra+q}, s35")
                    A(f"v_perm_b32 v{t0+2*q+1}, v{rb+q}, v{ra+q}, s36")
                if not last:
                    if gate >= 0 and (2 * pc + pr) == gate % 16 and not (noh or hstop):
                        A(f"s_cmp_lg_u32 s59, {gate // 16}")
                        A("s_cbranch_scc1 L_gate")
                        lds_poll("L_pc2", [f"ds_read_b64 v[42:43], v41 offset:{SCL}"], 43, 1)
                        A.label("L_gate", pad=False)
                    pace_issue(pc, pr, True)
                lane = bitrev4(4 * (pc & 3) + 2 * pr)
                for n in range(8):
                    A(f"v_dot2c_f32_bf16_dpp v{AO+n}, v{SC+(pc>>2)}, v{t0+n} row_newbcast:{lane} {DPP}")

    A.raw(".p2align 6")
    A.label("L_vloop")
    vbody(False)
    for r in range(6):
        A(f"v_mov_b32 v{SC+r}, v{SC+r+2}")
    A(f"s_add_u32 s60, s60, {8*16384}")
    A("s_add_u32 s59, s59, 1")
    if stamps:
        A("s_cmp_lg_u32 s59, 1")
        A("s_cbranch_scc1 L_st5")
        stamp(5)
        A.label("L_st5", pad=False)
    A("s_cmp_lt_u32 s59, 3")
    A("s_cbranch_scc1 L_vloop")
    stamp(6)
    if not (noh or hstop) and gate < 0:
        lds_poll("L_pc2", [f"ds_read_b64 v[42:43], v41 offset:{SCL}"], 43, 1)
    if noq:
        A("v_mov_b32 v25, 0")
        lds_poll("L_ps", [f"ds_read_b64 v[44:45], v25 offset:{QF}"], 44, 1)
        A("v_mov_b32 v47, v45")
    vbody(True)
    for c in range(4):
        A(f"v_permlane32_swap_b32 v{AO+c}, v{AO+c+4}")
    for c in range(4):
        A(f"v_add_f32 v{AO+c}, v{AO+c}, v{AO+c+4}")
    for c in range(2):
        A(f"v_permlane16_swap_b32 v{AO+c}, v{AO+c+2}")
    for c in range(2):
        A(f"v_add_f32 v{AO+c}, v{AO+c}, v{AO+c+2}")
    A(f"v_mul_f32 v{AO}, v{AO}, v42")
    A(f"v_mul_f32 v{AO+1}, v{AO+1}, v42")
    A(f"ds_write_b64 v40, v[{AO}:{AO+1}] offset:{OL}")
    A("s_waitcnt lgkmcnt(0)")
    stamp(3)
    A("s_barrier")
    if stamps:
        A("s_add_u32 s3, s3, 4")
    if not (noh or hstop):
        A("s_cmp_ge_u32 s2, 40")
        A("s_cbranch_scc1 L_h_done")
        A("s_branch L_red")
    else:
        A("s_branch L_h_done")
    A.label("L_end", pad=False)
    A("s_endpgm")
    A.raw("L_code_end:")
    A.raw('.section .rodata,"a"')
    A.raw(".p2align 6")
    A.raw(f".amdhsa_kernel {NAME}_kernel")
    A.raw("  .amdhsa_next_free_vgpr 256")
    A.raw("  .amdhsa_next_free_sgpr 102")
    A.raw("  .amdhsa_accum_offset 256")
    A.raw("  .amdhsa_group_segment_fixed_size 0")
    A.raw("  .amdhsa_kernarg_size 104")
    A.raw("  .amdhsa_user_sgpr_count 2")
    A.raw("  .amdhsa_user_sgpr_kernarg_segment_ptr 1")
    A.raw("  .amdhsa_system_sgpr_workgroup_id_x 1")
    A.raw("  .amdhsa_float_denorm_mode_32 3")
    A.raw("  .amdhsa_float_denorm_mode_16_64 3")
    A.raw(".end_amdhsa_kernel")
    return A


if __name__ == "__main__":
    out = sys.argv[1]
    kw = {}
    for a in sys.argv[2:]:
        for kv in a.split(","):
            k, v = kv.split("=")
            kw[k] = int(v) if v.lstrip("-").isdigit() else ("" if v == "none" else v)
    A = gen(**kw)
    open(out, "w").write(A.text())
    print(out, "instructions:", A.ninstr)
```

```python
import sys
from asmlib import Asm

NAME = "gated_mix__gqa_block_cached__geglu_ffn__decode"

EPOCH = 0
QP = 0x10000
FP = 0x60000
ML = 0xA0000
REC = 0x100000
YB = 0x200000
WS_BYTES = 0x2A0000
Q_LDS, MLL, QF, GF, SCL, VF, RED, OL, LDS_BYTES = 0, 1024, 1088, 1104, 1120, 1152, 2048, 3072, 6144
SPIN = 60000
LOG2E = 0x3FB8AA3B
SCALE = 0x3DB504F3
DPP = "row_mask:0xf bank_mask:0xf"


def bitrev4(t):
    return ((t & 1) << 3) | ((t & 2) << 1) | ((t & 4) >> 1) | ((t & 8) >> 3)


def gen(P=6, P0=8, PF=16, fast_it=2, early=0, stamps=0, pol="nt", wpol="nt", prefetch=1, hprio=1,
        qsleep=1, rsleep=3, hsleep=6, psleep=4, hstop=0, ydeep=2, qdeep=1, qdelay=48, mlate=1, rdelay=0, ydelay=0, rone=0):
    A = Asm()
    hdr = open("cdna_kernels/%s.s.ref" % NAME).read().split("; Override")[0]
    A.raw(hdr.rstrip())
    A.raw(f"; @launch grid=(256,1,1) block=(512,1,1) lds={LDS_BYTES}")
    A.raw('.amdgcn_target "amdgcn-amd-amdhsa--gfx950"')
    A.raw(".text")
    A.raw(f".globl {NAME}_kernel")
    A.raw(".p2align 8")
    A.raw(f".type {NAME}_kernel,@function")
    A.raw(f"{NAME}_kernel:")

    def stamp(k):
        if stamps:
            A(f"s_memrealtime s[{84+2*k}:{85+2*k}]")

    def stamp_out(role_sreg):
        A("s_waitcnt lgkmcnt(0)")
        A("s_lshl_b32 s56, s2, 9")
        A(f"s_lshl_b32 s57, {role_sreg}, 6")
        A("s_add_u32 s56, s56, s57")
        A("s_add_u32 s56, s56, 0x10000000")
        A("s_add_u32 s52, s28, s56")
        A("s_addc_u32 s53, s29, 0")
        A("s_mov_b32 s54, 64")
        A("v_mov_b32 v2, 0")
        A("s_mov_b64 exec, 1")
        for k in range(8):
            A(f"v_mov_b32 v16, s{84+2*k}")
            A(f"v_mov_b32 v17, s{85+2*k}")
            A(f"buffer_store_dwordx2 v[16:17], v2, s[52:55], 0 offen offset:{8*k}")
            A("s_nop 1")
        A("s_mov_b64 exec, -1")

    TQ = [246, 247, 248, 249]

    def tags(T):
        A(f"v_mov_b32 v{TQ[0]}, {T}")
        A(f"v_lshrrev_b32 v{TQ[1]}, 9, {T}")
        A(f"v_lshrrev_b32 v{TQ[2]}, 18, {T}")
        A(f"v_lshrrev_b32 v{TQ[3]}, 23, {T}")

    def pack4(dst, src):
        for k in range(4):
            A(f"v_add_u32 v{dst+k}, 0x100, v{src[k]}")
        for k in range(4):
            A(f"v_bfi_b32 v{dst+k}, s37, v{TQ[k]}, v{dst+k}")

    def check4(regs, bad):
        first = True
        for r in regs:
            for k in range(4):
                if first:
                    A(f"v_xor_b32 v{bad}, v{r+k}, v{TQ[k]}")
                    first = False
                else:
                    A(f"v_bitop3_b32 v{bad}, v{r+k}, v{TQ[k]}, v{bad} bitop3:0xbe")
        A(f"v_and_b32 v{bad}, 0x1ff, v{bad}")

    def poll4(lbl, regs, voff, soff, imm, bad, slp):
        A(f"s_mov_b32 s57, {SPIN}")
        A.label(lbl)
        for n, r in enumerate(regs):
            A(f"buffer_load_dwordx4 v[{r}:{r+3}], {voff}, s[44:47], {soff} offen offset:{imm[n]} sc1")
        A("s_mov_b64 exec, -1")
        A("s_waitcnt vmcnt(0)")
        check4(regs, bad)
        A(f"v_cmp_ne_u32 vcc, 0, v{bad}")
        A("s_sub_u32 s57, s57, 1")
        A(f"s_cbranch_scc1 {lbl}_ok")
        A(f"s_cbranch_vccz {lbl}_ok")
        A(f"s_sleep {slp}")
        A("s_mov_b64 exec, vcc")
        A(f"s_branch {lbl}")
        A.label(lbl + "_ok", pad=False)

    def lds_poll(lbl, rd, flagreg, slp):
        A(f"s_mov_b32 s57, {SPIN*16}")
        A.label(lbl)
        for r in rd:
            A(r)
        A("s_waitcnt lgkmcnt(0)")
        A(f"v_cmp_ne_u32 vcc, 1, v{flagreg}")
        A(f"s_cbranch_vccz {lbl}_ok")
        A(f"s_sleep {slp}")
        A("s_sub_u32 s57, s57, 1")
        A(f"s_cbranch_scc0 {lbl}")
        A.label(lbl + "_ok", pad=False)

    def allreduce(op, regs, tmps, levels):
        ctrl = {1: "quad_perm:[1,0,3,2]", 2: "quad_perm:[2,3,0,1]", 4: "row_ror:4", 8: "row_ror:8"}
        for lv in levels:
            if lv in ctrl:
                for r in regs:
                    A(f"{op}_dpp v{r}, v{r}, v{r} {ctrl[lv]} {DPP}")
            else:
                for r, t in zip(regs, tmps):
                    A(f"v_mov_b32 v{t}, v{r}")
                for r, t in zip(regs, tmps):
                    A(f"v_permlane{lv}_swap_b32 v{r}, v{t}")
                for r, t in zip(regs, tmps):
                    A(f"{op} v{r}, v{r}, v{t}")

    def round_pair(a, b, t):
        A(f"v_cvt_pk_bf16_f32 v{t}, v{a}, v{b}")
        A(f"v_lshlrev_b32 v{a}, 16, v{t}")
        A(f"v_and_b32 v{b}, 0xffff0000, v{t}")

    def red_setup(lane):
        A(f"v_lshrrev_b32 v200, 3, {lane}")
        A("v_mul_u32_u24 v200, 2560, v200")
        A(f"v_and_b32 v201, 7, {lane}")
        A("v_lshl_add_u32 v200, v201, 4, v200")
        A("s_cmp_ge_u32 s2, 20")
        A(f"s_cselect_b32 s76, {128*2560 - 20*128}, 0")
        A("s_lshl_b32 s56, s2, 7")
        A("s_add_u32 s76, s76, s56")
        A(f"s_mul_i32 s56, s77, {16*2560}")
        A("s_add_u32 s76, s76, s56")
        A(f"s_add_u32 s76, s76, {YB}")
        A(f"s_add_u32 s79, s76, {8*2560}")
        A("s_lshl_b32 s56, s77, 7")
        A("v_lshl_add_u32 v201, v201, 4, s56")
        A(f"v_lshrrev_b32 v202, 4, {lane}")
        A("v_lshl_add_u32 v201, v202, 2, v201")

    A("s_cmp_ge_u32 s2, 256")
    A("s_cbranch_scc1 L_end")
    A("s_load_dwordx16 s[4:19], s[0:1], 0")
    A("s_load_dwordx8 s[20:27], s[0:1], 64")
    A("s_load_dwordx2 s[28:29], s[0:1], 96")
    stamp(0)
    if stamps:
        for k in range(1, 8):
            A(f"s_mov_b64 s[{84+2*k}:{85+2*k}], 0")
    A("v_lshrrev_b32 v1, 6, v0")
    A("v_and_b32 v2, 15, v0")
    A("v_readfirstlane_b32 s3, v1")
    A("v_and_b32 v1, 63, v0")
    A("v_lshrrev_b32 v3, 4, v1")
    A("s_and_b32 s34, s2, 7")
    A("s_lshr_b32 s56, s2, 6")
    A("s_lshl_b32 s56, s56, 3")
    A("s_add_u32 s30, s34, s56")
    A("s_lshr_b32 s38, s2, 3")
    A("s_and_b32 s38, s38, 7")
    A("s_and_b32 s32, s38, 3")
    A("s_lshr_b32 s31, s38, 2")
    A("s_lshl_b32 s33, s31, 5")
    A("s_add_u32 s33, s33, s30")
    A("s_mov_b32 s35, 0x05040100")
    A("s_mov_b32 s36, 0x07060302")
    A("s_movk_i32 s37, 0x1ff")
    A("s_mov_b32 s43, 0x20000")
    A("s_mov_b32 s47, 0x20000")
    A("s_mov_b32 s51, 0x20000")
    A("s_mov_b32 s55, 0x20000")
    A(f"s_mov_b32 s46, {WS_BYTES}")
    A("s_mov_b32 s77, s3")
    A("s_cmp_ge_u32 s3, 4")
    A("s_cbranch_scc1 L_stream")

    if hprio:
        A(f"s_setprio {hprio}")
    A("s_lshr_b32 s63, s2, 3")
    A("s_bfe_u32 s64, s2, 0x10002")
    A("s_and_b32 s65, s2, 3")
    A("s_movk_i32 s56, 3456")
    A("s_lshl_b32 s57, s63, 7")
    A("s_movk_i32 s59, 256")
    A("s_movk_i32 s61, 32")
    A("s_movk_i32 s71, 16")
    A("s_lshl_b32 s62, s2, 9")
    A(f"s_add_u32 s62, s62, {FP}")
    A(f"s_mov_b32 s42, {640*3456}")
    A("s_cmp_lg_u32 s3, 0")
    A("s_cbranch_scc1 L_h_notq")
    A("s_movk_i32 s56, 8192")
    A("s_lshl_b32 s57, s30, 8")
    A("s_lshl_b32 s66, s31, 7")
    A("s_add_u32 s57, s57, s66")
    A(f"s_mov_b32 s59, {32*2048}")
    A("s_movk_i32 s61, 16")
    A("s_movk_i32 s71, 1024")
    A("s_lshl_b32 s62, s30, 11")
    A("s_add_u32 s62, s62, s66")
    A("s_lshl_b32 s66, s32, 8")
    A("s_add_u32 s62, s62, s66")
    A(f"s_add_u32 s62, s62, {QP}")
    A(f"s_mov_b32 s42, {640*8192}")
    A("s_mov_b32 s65, s32")
    A.label("L_h_notq", pad=False)
    A("s_mul_i32 s66, s65, 160")
    A("s_mul_i32 s66, s66, s56")
    A("s_add_u32 s57, s57, s66")
    A("s_mul_i32 s58, s65, 320")
    A("s_mul_i32 s67, s56, 25")
    A("v_lshlrev_b32 v5, 3, v3")
    A("v_mul_lo_u32 v5, v5, s56")
    A("v_lshl_add_u32 v5, v2, 3, v5")
    A("v_lshrrev_b32 v6, 3, v2")
    A("v_mul_u32_u24 v6, 1280, v6")
    A("v_lshl_add_u32 v6, v3, 4, v6")
    A("v_mov_b32 v7, 0")
    A("s_movk_i32 s50, 2560")
    A("s_cmp_eq_u32 s3, 0")
    A("s_cselect_b32 s66, 0, s2")
    A("s_cmp_ge_u32 s3, 2")
    A("s_cselect_b32 s66, 255, s66")
    A("s_waitcnt lgkmcnt(0)")
    A("s_mov_b32 s44, s28")
    A("s_mov_b32 s45, s29")
    A("s_mov_b32 s48, s4")
    A("s_mov_b32 s49, s5")
    A("s_cmp_eq_u32 s64, 0")
    A("s_cselect_b32 s40, s16, s18")
    A("s_cselect_b32 s41, s17, s19")
    A("s_cmp_eq_u32 s3, 0")
    A("s_cselect_b32 s40, s10, s40")
    A("s_cselect_b32 s41, s11, s41")
    A("s_cmp_ge_u32 s66, 216")
    A("s_cbranch_scc1 L_h_idle0")
    W0, X0, FR0, AC0 = 16, 96, 116, 132
    for ks in range(5):
        A(f"buffer_load_dwordx4 v[{X0+4*ks}:{X0+4*ks+3}], v6, s[48:51], s58 offen offset:{64*ks}")
        for e in range(8):
            r = W0 + 2 * (8 * ks + e)
            A(f"buffer_load_dwordx2 v[{r}:{r+1}], v5, s[40:43], s57 offen {wpol}")
            A(f"s_add_u32 s57, s57, {'s56' if e < 7 else 's67'}")
    A(f"buffer_load_dword v4, v7, s[44:47], 0 offen offset:{EPOCH} sc1")
    A("s_barrier")
    A("v_lshrrev_b32 v8, 1, v3")
    A("v_mul_lo_u32 v8, v8, s59")
    A("v_lshrrev_b32 v9, 1, v2")
    A("v_mul_lo_u32 v9, v9, s61")
    A("v_add_u32 v8, v8, v9")
    A("v_and_b32 v9, 1, v2")
    A("v_mul_lo_u32 v9, v9, s71")
    A("v_add_u32 v8, v8, v9")
    for ks in range(5):
        A(f"s_waitcnt vmcnt({46-9*(ks+1)})")
        for c in range(4):
            for d in range(4):
                lo = W0 + 2 * (8 * ks + 2 * d) + (c >> 1)
                hi = W0 + 2 * (8 * ks + 2 * d + 1) + (c >> 1)
                A(f"v_perm_b32 v{FR0+4*c+d}, v{hi}, v{lo}, {'s36' if c & 1 else 's35'}")
        for c in range(4):
            cc = "0" if ks == 0 else f"v[{AC0+4*c}:{AC0+4*c+3}]"
            A(f"v_mfma_f32_16x16x32_bf16 v[{AC0+4*c}:{AC0+4*c+3}], v[{X0+4*ks}:{X0+4*ks+3}], v[{FR0+4*c}:{FR0+4*c+3}], {cc}")
    A("s_waitcnt vmcnt(0)")
    A("v_add_u32 v4, 1, v4")
    tags("v4")
    pack4(12, [AC0, AC0 + 4, AC0 + 8, AC0 + 12])
    A("s_mov_b32 exec_lo, 0xffff")
    A("s_mov_b32 exec_hi, 0xffff")
    A("buffer_store_dwordx4 v[12:15], v8, s[44:47], s62 offen sc1")
    A("s_mov_b64 exec, -1")
    stamp(3)
    A("s_cmp_lg_u32 s3, 0")
    A("s_cbranch_scc1 L_h_b")

    A("v_lshlrev_b32 v5, 4, v1")
    A("s_lshl_b32 s56, s33, 11")
    A(f"s_add_u32 s56, s56, {QP}")
    QL = 148
    if qdelay:
        A(f"s_sleep {qdelay}")
    if qdeep == 1:
        poll4("L_pq", [QL, QL + 4], "v5", "s56", [0, 1024], 10, qsleep)
    else:
        def qissue():
            for n in range(2):
                A(f"buffer_load_dwordx4 v[{QL+4*n}:{QL+4*n+3}], v5, s[44:47], s56 offen offset:{1024*n} sc1")
        A(f"s_mov_b32 s57, {SPIN}")
        for _ in range(qdeep - 1):
            qissue()
            A(f"s_sleep {qsleep}")
        A.label("L_pq")
        qissue()
        A("s_mov_b64 exec, -1")
        A(f"s_waitcnt vmcnt({2*(qdeep-1)})")
        check4([QL, QL + 4], 10)
        A("v_cmp_ne_u32 vcc, 0, v10")
        A("s_sub_u32 s57, s57, 1")
        A("s_cbranch_scc1 L_pq_ok")
        A("s_cbranch_vccz L_pq_ok")
        A(f"s_sleep {qsleep}")
        A("s_mov_b64 exec, vcc")
        A("s_branch L_pq")
        A.label("L_pq_ok", pad=False)
        QS = QL
        QL = 172
        for n in range(8):
            A(f"v_mov_b32 v{QL+n}, v{QS+n}")
    for n in range(8):
        A(f"v_and_b32 v{QL+n}, 0xfffffe00, v{QL+n}")
    for n in range(4):
        A(f"v_permlane32_swap_b32 v{QL+n}, v{QL+n+4}")
    for n in range(4):
        A(f"v_add_f32 v{QL+n}, v{QL+n}, v{QL+n+4}")
    for n in range(2):
        A(f"v_permlane16_swap_b32 v{QL+n}, v{QL+n+2}")
    for n in range(2):
        A(f"v_add_f32 v{QL+n}, v{QL+n}, v{QL+n+2}")
    A(f"v_cvt_pk_bf16_f32 v10, v{QL}, v{QL+1}")
    A("v_lshlrev_b32 v9, 4, v2")
    A("v_lshl_add_u32 v9, v3, 2, v9")
    A(f"ds_write_b32 v9, v10 offset:{Q_LDS}")
    A("v_mov_b32 v10, 1")
    A("v_mov_b32 v11, v4")
    A("s_waitcnt lgkmcnt(0)")
    A(f"ds_write_b64 v7, v[10:11] offset:{QF}")
    stamp(6)
    if hstop:
        A("s_branch L_h_stop")
    red_setup("v1")
    A("s_cmp_ge_u32 s2, 20")
    A("s_cselect_b32 s58, 640, 0")
    A("s_cselect_b32 s57, 20, 0")
    A("s_sub_u32 s57, s2, s57")
    A("s_bfe_u32 s56, s57, 0x10002")
    A("s_mul_i32 s56, s56, 1280")
    A("s_lshr_b32 s59, s57, 3")
    A("s_lshl_b32 s59, s59, 8")
    A("s_add_u32 s56, s56, s59")
    A("s_and_b32 s59, s57, 1")
    A("s_lshl_b32 s59, s59, 7")
    A("s_add_u32 s56, s56, s59")
    A("s_bfe_u32 s59, s57, 0x10001")
    A("s_lshl_b32 s59, s59, 3")
    A("s_add_u32 s78, s56, s59")
    A("s_bfe_u32 s56, s57, 0x10001")
    A("s_mul_i32 s56, s56, 1280")
    A("s_and_b32 s59, s57, 1")
    A("s_lshl_b32 s59, s59, 3")
    A("s_add_u32 s56, s56, s59")
    A("s_add_u32 s56, s56, 512")
    A("s_cmp_ge_u32 s57, 16")
    A("s_cselect_b32 s78, s56, s78")
    A("s_add_u32 s78, s78, s58")
    A("v_and_b32 v8, 7, v1")
    A("v_lshrrev_b32 v9, 5, v1")
    A("v_lshlrev_b32 v9, 2, v9")
    A("v_lshl_add_u32 v170, v8, 4, v9")
    A("s_lshl_b32 s75, s33, 11")
    A("s_lshl_b32 s56, s32, 9")
    A("s_add_u32 s75, s75, s56")
    A(f"s_add_u32 s75, s75, {REC}")
    A("v_and_b32 v8, 3, v1")
    A("v_lshlrev_b32 v11, 7, v8")
    A("v_lshlrev_b32 v8, 4, v8")
    A("s_lshl_b32 s56, s33, 9")
    A(f"s_add_u32 s56, s56, {ML}")
    A("s_lshl_b32 s59, s32, 7")
    A("v_mov_b32 v9, s59")
    A(f"s_mov_b32 s58, 0x{LOG2E:08x}")
    lds_poll("L_pl", [f"ds_read_b128 v[152:155], v8 offset:{MLL}"], 154, 4)

    def stats(mr, lr, M, Lr, t):
        A(f"v_mov_b32 v{M}, v{mr}")
        allreduce("v_max_f32", [M], None, (1, 2))
        A(f"v_sub_f32 v{t}, v{mr}, v{M}")
        A(f"v_mul_f32 v{t}, s58, v{t}")
        A(f"v_exp_f32 v{t}, v{t}")
        A(f"v_mul_f32 v{Lr}, v{lr}, v{t}")
        allreduce("v_add_f32", [Lr], None, (1, 2))

    stats(152, 153, 156, 157, 160)
    A("v_and_b32 v158, 0xffff0000, v157")
    A("v_sub_f32 v159, v157, v158")
    A(f"v_bfi_b32 v156, s37, v{TQ[0]}, v156")
    A(f"v_bfi_b32 v157, s37, v{TQ[1]}, v158")
    A(f"v_bfi_b32 v158, s37, v{TQ[2]}, v159")
    A(f"v_and_b32 v159, 0x1ff, v{TQ[3]}")
    A("s_mov_b64 exec, 1")
    A("buffer_store_dwordx4 v[156:159], v9, s[44:47], s56 offen sc1")
    A("s_mov_b64 exec, -1")
    if mlate:
        lds_poll("L_pv", [f"ds_read_b32 v10, v7 offset:{VF}"], 10, 16)
    poll4("L_pm", [160], "v11", "s56", [0], 10, 8)
    for k in range(3):
        A(f"v_and_b32 v{160+k}, 0xfffffe00, v{160+k}")
    A("v_add_f32 v161, v161, v162")
    stats(160, 161, 162, 163, 164)
    A("v_rcp_f32 v163, v163")
    A("v_sub_f32 v164, v152, v162")
    A("v_mul_f32 v164, s58, v164")
    A("v_exp_f32 v164, v164")
    A("v_mov_b32 v165, 1")
    A("v_mul_f32 v164, v164, v163")
    A("v_lshrrev_b32 v8, 1, v8")
    A(f"ds_write_b64 v8, v[164:165] offset:{SCL}")
    stamp(4)
    A("s_barrier")
    for w in range(4):
        A(f"ds_read_b128 v[{16+4*w}:{19+4*w}], v5 offset:{OL+512*w}")
    A("s_waitcnt lgkmcnt(2)")
    for k in range(4):
        A(f"v_add_f32 v{16+k}, v{16+k}, v{20+k}")
    A("s_waitcnt lgkmcnt(0)")
    for k in range(4):
        A(f"v_add_f32 v{24+k}, v{24+k}, v{28+k}")
    for k in range(4):
        A(f"v_add_f32 v{16+k}, v{16+k}, v{24+k}")
    pack4(16, [16, 17, 18, 19])
    A("s_mov_b32 exec_hi, 0")
    A("buffer_store_dwordx4 v[16:19], v5, s[44:47], s75 offen sc1")
    A("s_mov_b64 exec, -1")
    stamp(5)
    A("s_branch L_fin")

    A.label("L_h_idle0", pad=False)
    A("s_cmp_lg_u32 s3, 3")
    A("s_cbranch_scc1 L_h_noinit")
    A("v_lshlrev_b32 v9, 3, v1")
    A("v_mov_b32 v10, 0")
    A("v_mov_b32 v11, 0")
    A(f"ds_write_b64 v9, v[10:11] offset:{MLL}")
    A("s_waitcnt lgkmcnt(0)")
    A.label("L_h_noinit", pad=False)
    A("s_barrier")
    if prefetch:
        A("s_cmp_lg_u32 s3, 3")
        A("s_cbranch_scc1 L_h_nopf")
        A("s_getpc_b64 s[52:53]")
        A.raw("L_pc:")
        A(f"s_sub_u32 s52, s52, L_pc-{NAME}_kernel")
        A("s_subb_u32 s53, s53, 0")
        A(f"s_mov_b32 s54, L_code_end-{NAME}_kernel")
        A("v_lshlrev_b32 v9, 12, v1")
        A("s_lshr_b32 s56, s2, 3")
        A("s_lshl_b32 s56, s56, 7")
        A("s_mov_b64 exec, 0xff")
        A("buffer_load_dword v200, v9, s[52:55], s56 offen")
        A("s_mov_b64 exec, -1")
        A.label("L_h_nopf", pad=False)
    A("s_cmp_lg_u32 s3, 2")
    A("s_cbranch_scc1 L_h_b")
    A("s_mov_b32 s52, s22")
    A("s_mov_b32 s53, s23")
    A("s_movk_i32 s54, 1280")
    A("v_and_b32 v9, 31, v1")
    A("v_lshlrev_b32 v9, 3, v9")
    A("v_lshrrev_b32 v10, 5, v1")
    A("v_mul_u32_u24 v11, 1280, v10")
    A("v_add_u32 v11, v11, v9")
    for t in range(5):
        A(f"buffer_load_dwordx2 v[{200+2*t}:{201+2*t}], v11, s[48:51], 0 offen offset:{256*t}")
        A(f"buffer_load_dwordx2 v[{210+2*t}:{211+2*t}], v9, s[52:55], 0 offen offset:{256*t}")
    A("v_mov_b32 v12, 0")
    A("s_waitcnt vmcnt(0)")
    for t in range(10):
        A(f"v_lshlrev_b32 v220, 16, v{200+t}")
        A(f"v_lshlrev_b32 v221, 16, v{210+t}")
        A(f"v_and_b32 v222, 0xffff0000, v{200+t}")
        A(f"v_and_b32 v223, 0xffff0000, v{210+t}")
        A("v_mul_f32 v220, v220, v221")
        A("v_mul_f32 v222, v222, v223")
        round_pair(220, 222, 224)
        A("v_add_f32 v12, v12, v220")
        A("v_add_f32 v12, v12, v222")
    allreduce("v_add_f32", [12], [220], (1, 2, 8, 4, 16))
    A("v_cvt_pk_bf16_f32 v12, v12, v12")
    A("v_and_b32 v12, 0xffff0000, v12")
    A(f"v_mul_f32 v12, 0x{LOG2E ^ 0x80000000:08x}, v12")
    A("v_exp_f32 v12, v12")
    A("v_add_f32 v12, 1.0, v12")
    A("v_rcp_f32 v12, v12")
    A("v_cvt_pk_bf16_f32 v12, v12, v12")
    A("v_and_b32 v12, 0xffff0000, v12")
    A("v_lshlrev_b32 v10, 2, v10")
    A(f"ds_write_b32 v10, v12 offset:{GF+4}")
    A("v_mov_b32 v11, 1")
    A("s_waitcnt lgkmcnt(0)")
    A(f"ds_write_b32 v7, v11 offset:{GF}")

    A.label("L_h_b")
    A("s_sub_u32 s72, s3, 1")
    A("s_lshr_b32 s73, s38, 1")
    A("s_and_b32 s74, s38, 1")
    A("s_lshl_b32 s56, s30, 2")
    A("s_add_u32 s56, s56, s73")
    A("s_mul_i32 s56, s56, 40960")
    A("s_add_u32 s40, s12, s56")
    A("s_addc_u32 s41, s13, 0")
    A("s_mov_b32 s42, 40960")
    A("s_lshr_b32 s70, s2, 4")
    A("s_lshl_b32 s70, s70, 3")
    A("s_add_u32 s70, s70, s34")
    A("s_mul_i32 s56, s70, 20480")
    A("s_add_u32 s52, s20, s56")
    A("s_addc_u32 s53, s21, 0")
    A("s_cmp_lt_u32 s70, 108")
    A("s_cselect_b32 s54, 20480, 0")
    A("s_cselect_b32 s52, s52, s20")
    A("s_cselect_b32 s53, s53, s21")
    A("s_mul_i32 s56, s74, 640")
    A("s_lshl_b32 s58, s72, 8")
    A("s_add_u32 s56, s56, s58")
    A("s_add_u32 s58, s56, 5120")
    A("s_cmp_eq_u32 s72, 2")
    A("s_cselect_b32 s80, 0x00ff00ff, -1")
    A("s_mov_b32 s81, s80")
    A("v_mul_u32_u24 v8, 10240, v3")
    A("v_lshl_add_u32 v5, v2, 4, v8")
    A("v_mul_u32_u24 v8, 5120, v3")
    A("v_lshl_add_u32 v6, v2, 4, v8")
    A("s_mov_b64 exec, s[80:81]")
    for e in range(8):
        A(f"buffer_load_dwordx4 v[{16+4*e}:{19+4*e}], v5, s[40:43], {'s56' if e < 4 else 's58'} offen offset:{1280*(e&3)} {wpol}")
    for e in range(4):
        A(f"buffer_load_dwordx4 v[{48+4*e}:{51+4*e}], v6, s[52:55], s56 offen offset:{1280*e} {wpol}")
    A("s_mov_b64 exec, -1")
    FO, FD, Z = 64, 96, 164
    lds_poll("L_pt", [f"ds_read_b64 v[10:11], v7 offset:{QF}"], 10, 2)
    tags("v11")
    A("v_lshrrev_b32 v9, 5, v1")
    A("v_lshlrev_b32 v9, 2, v9")
    lds_poll("L_pg", [f"ds_read_b32 v10, v7 offset:{GF}", f"ds_read_b32 v112, v9 offset:{GF+4}"], 10, 2)
    A("v_sub_f32 v113, 1.0, v112")
    A("v_cvt_pk_bf16_f32 v113, v113, v113")
    A("v_and_b32 v113, 0xffff0000, v113")
    A("s_waitcnt vmcnt(0)")
    for c in range(8):
        sel = 's36' if c & 1 else 's35'
        for d in range(4):
            A(f"v_perm_b32 v{FO+4*c+d}, v{16+4*(2*d+1)+(c>>1)}, v{16+4*(2*d)+(c>>1)}, {sel}")
        for d in range(2):
            A(f"v_perm_b32 v{FD+2*c+d}, v{48+4*(2*d+1)+(c>>1)}, v{48+4*(2*d)+(c>>1)}, {sel}")
    if hstop:
        A("s_branch L_h_stop")
    for k in range(4):
        A(f"v_mov_b32 v{Z+k}, 0")
    A("v_and_b32 v10, 4, v2")
    A("v_cmp_eq_u32 s[68:69], 0, v10")
    A("s_cmp_ge_u32 s70, 108")
    A("s_cbranch_scc1 L_h_nof2")
    A("v_and_b32 v9, 7, v2")
    A("v_lshlrev_b32 v9, 9, v9")
    A("v_lshrrev_b32 v10, 3, v2")
    A("v_lshl_add_u32 v9, v10, 8, v9")
    A("v_lshl_add_u32 v9, v3, 4, v9")
    A("s_lshr_b32 s56, s70, 2")
    A("s_lshl_b32 s56, s56, 12")
    A("s_and_b32 s58, s70, 3")
    A("s_lshl_b32 s58, s58, 6")
    A("s_add_u32 s56, s56, s58")
    A(f"s_add_u32 s56, s56, {FP}")
    poll4("L_pf", [116], "v9", "s56", [0], 10, 4)
    val, tmp, U = [116, 117, 118, 119], [120, 121, 122, 123], [124, 125, 126, 127]
    for r in val:
        A(f"v_and_b32 v{r}, 0xfffffe00, v{r}")
    allreduce("v_add_f32", val, None, (1, 2))
    round_pair(116, 117, 120)
    round_pair(118, 119, 121)
    A("s_mov_b32 s56, 0x3d372713")
    A("s_mov_b32 s57, 0xc0135761")
    for n in range(4):
        A(f"v_mov_b32_dpp v{U[n]}, v{val[n]} row_shl:4 {DPP} bound_ctrl:0")
    for n in range(4):
        A(f"v_mul_f32 v{tmp[n]}, v{val[n]}, v{val[n]}")
    for n in range(4):
        A(f"v_mul_f32 v{tmp[n]}, v{tmp[n]}, v{val[n]}")
    for n in range(4):
        A(f"v_fma_f32 v{tmp[n]}, v{tmp[n]}, s56, v{val[n]}")
    for n in range(4):
        A(f"v_mul_f32 v{tmp[n]}, s57, v{tmp[n]}")
    for n in range(4):
        A(f"v_exp_f32 v{tmp[n]}, v{tmp[n]}")
    for n in range(4):
        A(f"v_add_f32 v{tmp[n]}, 1.0, v{tmp[n]}")
    for n in range(4):
        A(f"v_rcp_f32 v{tmp[n]}, v{tmp[n]}")
    for n in range(4):
        A(f"v_mul_f32 v{val[n]}, v{val[n]}, v{tmp[n]}")
    round_pair(116, 117, 120)
    round_pair(118, 119, 121)
    for n in range(4):
        A(f"v_mul_f32 v{val[n]}, v{val[n]}, v{U[n]}")
    A("v_cvt_pk_bf16_f32 v120, v116, v117")
    A("v_cvt_pk_bf16_f32 v121, v118, v119")
    A("v_mov_b32 v124, 0")
    A("v_mov_b32 v125, 0")
    A("v_cndmask_b32 v122, 0, v120, s[68:69]")
    A("v_cndmask_b32 v123, 0, v121, s[68:69]")
    A("v_mov_b32_dpp v124, v120 row_shr:4 row_mask:0xf bank_mask:0xa")
    A("v_mov_b32_dpp v125, v121 row_shr:4 row_mask:0xf bank_mask:0xa")
    for c in range(8):
        acc = 132 + 4 * (c & 3)
        a = "v[124:125]" if c >= 4 else "v[122:123]"
        cc = f"v[{acc}:{acc+3}]" if c >= 4 else "0"
        A(f"v_mfma_f32_16x16x16_bf16 v[{acc}:{acc+3}], {a}, v[{FD+2*c}:{FD+2*c+1}], {cc}")
    for c in range(4):
        A(f"v_mul_f32 v{Z+c}, v{132+4*c}, v113")
    A.label("L_h_nof2")
    stamp(6)
    red_setup("v1")
    A("v_lshrrev_b32 v8, 3, v2")
    A("v_lshlrev_b32 v8, 16, v8")
    A("v_and_b32 v9, 3, v2")
    A("v_lshl_add_u32 v8, v9, 9, v8")
    A("v_lshl_add_u32 v8, v3, 5, v8")
    A("v_and_b32 v9, 4, v2")
    A("v_lshl_add_u32 v168, v9, 2, v8")
    A("s_lshl_b32 s56, s30, 11")
    A("s_lshl_b32 s75, s73, 7")
    A("s_add_u32 s75, s75, s56")
    A(f"s_add_u32 s75, s75, {REC}")
    A("s_lshl_b32 s56, s74, 7")
    A("s_lshl_b32 s58, s34, 4")
    A("s_add_u32 s56, s56, s58")
    A("s_lshr_b32 s58, s2, 6")
    A("s_lshl_b32 s58, s58, 2")
    A("s_add_u32 s56, s56, s58")
    A("s_add_u32 s56, s56, s73")
    A("s_mul_i32 s56, s56, 2560")
    A("s_lshl_b32 s58, s72, 10")
    A("s_add_u32 s56, s56, s58")
    A(f"s_add_u32 s74, s56, {YB}")
    A("s_cmp_eq_u32 s72, 2")
    A("s_cselect_b32 s58, 7, 8")
    A("v_lshlrev_b32 v8, s58, v3")
    A("v_lshl_add_u32 v169, v2, 4, v8")
    A("v_mov_b32 v170, 0")
    for r in (30, 31, 32, 33):
        A(f"v_mov_b32 v{r}, 0")
    stamp(4)
    A("s_barrier")
    if rdelay:
        A(f"s_sleep {rdelay}")
    A(f"s_mov_b32 s57, {SPIN}")
    A("buffer_load_dwordx4 v[16:19], v168, s[44:47], s75 offen sc1")
    A.label("L_pr")
    if rsleep:
        A(f"s_sleep {rsleep}")
    A("buffer_load_dwordx4 v[16:19], v168, s[44:47], s75 offen sc1")
    A("s_mov_b64 exec, -1")
    A("s_waitcnt vmcnt(1)")
    check4([16], 10)
    A("v_cmp_ne_u32 vcc, 0, v10")
    A("s_sub_u32 s57, s57, 1")
    A("s_cbranch_scc1 L_pr_ok")
    A("s_and_b64 exec, vcc, exec")
    A("s_cbranch_scc1 L_pr")
    A("s_mov_b64 exec, -1")
    A.label("L_pr_ok", pad=False)
    stamp(1)
    for k in range(4):
        A(f"v_and_b32 v{20+k}, 0xfffffe00, v{16+k}")
    allreduce("v_add_f32", [20, 21, 22, 23], None, (1, 2))
    A("v_cvt_pk_bf16_f32 v24, v20, v21")
    A("v_cvt_pk_bf16_f32 v25, v22, v23")
    A("v_cndmask_b32 v28, 0, v24, s[68:69]")
    A("v_cndmask_b32 v29, 0, v25, s[68:69]")
    A("v_mov_b32_dpp v30, v24 row_shl:4 row_mask:0xf bank_mask:0x5")
    A("v_mov_b32_dpp v31, v25 row_shl:4 row_mask:0xf bank_mask:0x5")
    A("v_mov_b32_dpp v32, v24 row_shr:4 row_mask:0xf bank_mask:0xa")
    A("v_mov_b32_dpp v33, v25 row_shr:4 row_mask:0xf bank_mask:0xa")
    A("v_cndmask_b32 v34, v24, 0, s[68:69]")
    A("v_cndmask_b32 v35, v25, 0, s[68:69]")
    for c in range(8):
        acc = 132 + 4 * (c & 3)
        a = "v[32:35]" if c >= 4 else "v[28:31]"
        cc = f"v[{acc}:{acc+3}]" if c >= 4 else "0"
        A(f"v_mfma_f32_16x16x32_bf16 v[{acc}:{acc+3}], {a}, v[{FO+4*c}:{FO+4*c+3}], {cc}")
    for c in range(4):
        A(f"v_fma_f32 v{8+c}, v{132+4*c}, v112, v{Z+c}")
    pack4(8, [8, 9, 10, 11])
    A("s_mov_b64 exec, s[80:81]")
    A("buffer_store_dwordx4 v[8:11], v169, s[44:47], s74 offen sc1")
    A("s_mov_b64 exec, -1")
    stamp(5)

    A.label("L_fin", pad=False)
    A("s_cmp_ge_u32 s2, 40")
    A("s_cbranch_scc1 L_done")
    SA = 204
    SO = ["s76", "s79"]
    if ydelay:
        A(f"s_sleep {ydelay}")
    A(f"s_mov_b32 s57, {SPIN}")
    for i in range(2):
        A(f"buffer_load_dwordx4 v[{SA+4*i}:{SA+4*i+3}], v200, s[44:47], {SO[i]} offen sc1")
    A("s_mov_b32 s52, s24")
    A("s_mov_b32 s53, s25")
    A("s_movk_i32 s54, 2560")
    A("s_waitcnt vmcnt(0)")
    A("s_branch L_y_c")
    A.label("L_y1", pad=False)
    A(f"s_sleep {hsleep}")
    A("s_mov_b64 exec, 0xff")
    A(f"buffer_load_dwordx4 v[{SA}:{SA+3}], v200, s[44:47], s76 offen sc1")
    A("s_waitcnt vmcnt(0)")
    check4([SA], 236)
    A("v_cmp_ne_u32 vcc, 0, v236")
    A("s_sub_u32 s57, s57, 1")
    A("s_cbranch_scc1 L_y2")
    A("s_cbranch_vccnz L_y1")
    A.label("L_y2", pad=False)

    def yround():
        for i in range(2):
            A(f"s_or_b64 exec, s[{64+2*i}:{65+2*i}], 1")
            A(f"buffer_load_dwordx4 v[{SA+4*i}:{SA+4*i+3}], v200, s[44:47], {SO[i]} offen sc1")
        A("s_mov_b64 exec, -1")

    def ycheck():
        for i in range(2):
            check4([SA + 4 * i], 236 + i)
        for i in range(2):
            A(f"v_cmp_ne_u32 s[{64+2*i}:{65+2*i}], 0, v{236+i}")
        A("s_or_b64 s[58:59], s[64:65], s[66:67]")
        A("s_cbranch_scc0 L_y_ok")

    for _ in range(ydeep - 1):
        yround()
        if psleep:
            A(f"s_sleep {psleep}")
    A.label("L_y2l", pad=False)
    yround()
    A(f"s_waitcnt vmcnt({2*(ydeep-1)})")
    ycheck()
    if psleep:
        A(f"s_sleep {psleep}")
    A("s_sub_u32 s57, s57, 1")
    A("s_cbranch_scc0 L_y2l")
    A("s_branch L_y_ok")
    A.label("L_y_c", pad=False)
    ycheck()
    A("s_and_b32 s58, s64, 0xff")
    A("s_cbranch_scc1 L_y1")
    A("s_branch L_y2")
    A.label("L_y_ok", pad=False)
    stamp(2)
    for n in range(8):
        A(f"v_and_b32 v{220+n}, 0xfffffe00, v{SA+n}")
    for k in range(4):
        A(f"v_add_f32 v{220+k}, v{220+k}, v{224+k}")
    allreduce("v_add_f32", [220, 221, 222, 223], None, (8,))
    A("v_permlane16_swap_b32 v220, v221")
    A("v_permlane16_swap_b32 v222, v223")
    A("v_add_f32 v220, v220, v221")
    A("v_add_f32 v222, v222, v223")
    A("v_permlane32_swap_b32 v220, v222")
    A("v_add_f32 v220, v220, v222")
    A(f"ds_write_b32 v201, v220 offset:{RED}")
    A("s_waitcnt lgkmcnt(0)")
    A("s_barrier")
    A("s_cmp_lg_u32 s77, 0")
    A("s_cbranch_scc1 L_done")
    for w in range(1, 8):
        A(f"ds_read_b32 v{220+w}, v201 offset:{RED+128*w}")
    A("s_waitcnt lgkmcnt(0)")
    for step in (1, 2, 4):
        for i in range(0, 8, 2 * step):
            A(f"v_add_f32 v{220+i}, v{220+i}, v{220+i+step}")
    A("v_mov_b32 v221, v220")
    A("v_permlane16_swap_b32 v220, v221")
    A("v_cvt_pk_bf16_f32 v10, v220, v221")
    A("s_mov_b32 exec_lo, 0xff")
    A("s_mov_b32 exec_hi, 0xff")
    A("buffer_store_dword v10, v170, s[52:55], s78 offen")
    A("s_cmp_lg_u32 s2, 0")
    A("s_cbranch_scc1 L_done")
    A("s_mov_b64 exec, 1")
    A(f"buffer_store_dword v{TQ[0]}, v170, s[44:47], 0 offen offset:{EPOCH} sc1")
    if hstop:
        A("s_branch L_done")
        A.label("L_h_stop")
        A("s_barrier")
    A.label("L_done", pad=False)
    if stamps:
        A("s_mov_b64 exec, -1")
        A("s_waitcnt vmcnt(0)")
        stamp(7)
        stamp_out("s77")
    A("s_endpgm")

    A.raw(".p2align 6")
    A.label("L_stream", pad=False)
    A("s_sub_u32 s3, s3, 4")
    A("s_lshl_b32 s56, s33, 2")
    A("s_add_u32 s56, s56, s32")
    A("s_lshl_b32 s56, s56, 19")
    A("s_lshl_b32 s57, s3, 12")
    A("v_lshlrev_b32 v4, 4, v1")
    A("v_add_u32 v50, s57, v4")
    A("s_mov_b32 s42, 0x80000")
    A("s_waitcnt lgkmcnt(0)")
    A("s_add_u32 s40, s6, s56")
    A("s_addc_u32 s41, s7, 0")
    A("s_add_u32 s48, s8, s56")
    A("s_addc_u32 s49, s9, 0")
    RING, SC, AO = 64, 8, 16

    def issue2(pc, hf):
        for t in (2 * hf, 2 * hf + 1):
            r = RING + 16 * pc + 4 * t
            A(f"buffer_load_dwordx4 v[{r}:{r+3}], v50, s[40:43], s58 offen offset:{1024*t} {pol}")

    for pc in range(8):
        A(f"s_mov_b32 s58, {16384*pc}")
        for hf in range(2):
            if 2 * pc + hf == early:
                A("s_barrier")
            if 4 * pc + 2 * hf >= P0:
                A(f"s_waitcnt vmcnt({P0-2})")
            issue2(pc, hf)
    A("s_mov_b32 s44, s28")
    A("s_mov_b32 s45, s29")
    A("v_and_b32 v4, 2, v0")
    A("v_cmp_ne_u32 s[80:81], 0, v4")
    A("v_and_b32 v4, 1, v0")
    A("v_cmp_ne_u32 s[82:83], 0, v4")
    for r in range(8):
        A(f"v_mov_b32 v{AO+r}, 0")
    A("v_lshlrev_b32 v40, 5, v2")
    A("v_lshl_add_u32 v40, v3, 3, v40")
    A("s_lshl_b32 s56, s3, 9")
    A("v_add_u32 v40, s56, v40")
    A("s_lshl_b32 s56, s3, 3")
    A("v_mov_b32 v41, s56")
    red_setup("v1")
    A("v_lshlrev_b32 v24, 4, v2")
    A("v_mov_b32 v25, 0")
    lds_poll("L_ps", [f"ds_read_b64 v[44:45], v25 offset:{QF}"], 44, 1)
    A(f"ds_read_b128 v[4:7], v24 offset:{Q_LDS}")
    stamp(1)
    tags("v45")
    A("s_mov_b32 s59, 0")
    A(f"s_mov_b32 s60, {8*16384}")
    A("s_waitcnt lgkmcnt(0)")

    def pace_issue(pc, hf, vf=False):
        if hf == 0:
            A(f"s_add_u32 s58, s60, {16384*pc}")
        if vf and fast_it < 3:
            A(f"s_cmp_ge_u32 s59, {fast_it}")
            A(f"s_cbranch_scc1 L_vf{pc}_{hf}")
            A(f"s_waitcnt vmcnt({P-2})")
            A.label(f"L_vf{pc}_{hf}", pad=False)
            A(f"s_waitcnt vmcnt({PF-2})")
        else:
            A(f"s_waitcnt vmcnt({P-2})")
        issue2(pc, hf)

    A.raw(".p2align 6")
    A.label("L_kloop")
    A("s_cmp_eq_u32 s59, 3")
    A("s_cselect_b32 s40, s48, s40")
    A("s_cselect_b32 s41, s49, s41")
    A("s_cselect_b32 s60, 0, s60")
    for r in range(6):
        A(f"v_mov_b32 v{SC+r}, v{SC+r+2}")
    BR, CR = 32, 36
    for pc in range(8):
        a = 24 + 4 * (pc & 1)
        for d in range(4):
            for t in range(4):
                r = RING + 16 * pc + 4 * t + d
                if d == 0:
                    A(f"v_dot2_f32_bf16 v{a+t}, v{r}, v{4+d}, 0")
                else:
                    A(f"v_dot2c_f32_bf16 v{a+t}, v{r}, v{4+d}")
        pace_issue(pc, 0)
        A(f"v_add_f32_dpp v{a}, v{a}, v{a} row_ror:8 row_mask:0xf bank_mask:0x3")
        A(f"v_add_f32_dpp v{a+2}, v{a+2}, v{a+2} row_ror:8 row_mask:0xf bank_mask:0x3")
        A(f"v_add_f32_dpp v{a}, v{a+1}, v{a+1} row_ror:8 row_mask:0xf bank_mask:0xc")
        A(f"v_add_f32_dpp v{a+2}, v{a+3}, v{a+3} row_ror:8 row_mask:0xf bank_mask:0xc")
        bq = BR + (pc & 1)
        A(f"v_add_f32_dpp v{bq}, v{a}, v{a} row_shl:4 row_mask:0xf bank_mask:0x5")
        A(f"v_add_f32_dpp v{bq}, v{a+2}, v{a+2} row_shr:4 row_mask:0xf bank_mask:0xa")
        if pc & 1:
            cq = CR + ((pc >> 1) & 1)
            A(f"v_cndmask_b32 v34, v{BR+1}, v{BR}, s[80:81]")
            A(f"v_cndmask_b32 v35, v{BR}, v{BR+1}, s[80:81]")
            A(f"v_add_f32_dpp v{cq}, v34, v35 quad_perm:[2,3,0,1] {DPP}")
        if (pc & 3) == 3:
            A(f"v_cndmask_b32 v34, v{CR+1}, v{CR}, s[82:83]")
            A(f"v_cndmask_b32 v35, v{CR}, v{CR+1}, s[82:83]")
            A(f"v_add_f32_dpp v{SC+6+(pc>>2)}, v34, v35 quad_perm:[1,0,3,2] {DPP}")
        pace_issue(pc, 1)
    A(f"s_add_u32 s60, s60, {8*16384}")
    A("s_add_u32 s59, s59, 1")
    A("s_cmp_lt_u32 s59, 4")
    A("s_cbranch_scc1 L_kloop")
    stamp(4)
    A(f"s_mov_b32 s56, 0x{SCALE:08x}")
    A(f"s_mov_b32 s57, 0x{LOG2E:08x}")
    for rnd in range(2):
        for n in range(0, 8, 2):
            A(f"v_cvt_pk_bf16_f32 v{24+n}, v{SC+n}, v{SC+n+1}")
        for n in range(0, 8, 2):
            A(f"v_lshlrev_b32 v{SC+n}, 16, v{24+n}")
            A(f"v_and_b32 v{SC+n+1}, 0xffff0000, v{24+n}")
        if rnd == 0:
            for n in range(8):
                A(f"v_mul_f32 v{SC+n}, s56, v{SC+n}")
    A(f"v_max3_f32 v32, v{SC}, v{SC+1}, v{SC+2}")
    A(f"v_max3_f32 v33, v{SC+3}, v{SC+4}, v{SC+5}")
    A(f"v_max3_f32 v32, v32, v{SC+6}, v{SC+7}")
    A("v_max_f32 v32, v32, v33")
    allreduce("v_max_f32", [32], [33], (1, 2, 4, 8, 16, 32))
    for n in range(8):
        A(f"v_sub_f32 v{SC+n}, v{SC+n}, v32")
    for n in range(8):
        A(f"v_mul_f32 v{SC+n}, s57, v{SC+n}")
    for n in range(8):
        A(f"v_exp_f32 v{SC+n}, v{SC+n}")
    for n in range(0, 8, 2):
        A(f"v_add_f32 v{24+n}, v{SC+n}, v{SC+n+1}")
    A("v_add_f32 v24, v24, v26")
    A("v_add_f32 v28, v28, v30")
    A("v_add_f32 v33, v24, v28")
    for n in range(8):
        A(f"v_mov_b32_dpp v{24+n}, v{SC+n} row_ror:8 {DPP}")
    for n in range(8):
        A(f"v_cvt_pk_bf16_f32 v{SC+n}, v{SC+n}, v{24+n}")
    allreduce("v_add_f32", [33], [36], (1, 2, 8, 4, 16, 32))
    A("v_mov_b32 v34, 1")
    A("v_mov_b32 v35, 0")
    A("s_lshl_b32 s56, s3, 4")
    A("v_mov_b32 v36, s56")
    A("s_mov_b64 exec, 1")
    A(f"ds_write_b128 v36, v[32:35] offset:{MLL}")
    A("s_mov_b64 exec, -1")
    A("s_mov_b32 s59, 0")

    def vbody(last):
        for pc in range(8):
            for pr in range(2):
                if last:
                    A(f"s_waitcnt vmcnt({30-4*pc-2*pr})")
                t0 = 24 + 8 * pr
                ra = RING + 16 * pc + 8 * pr
                rb = ra + 4
                for q in range(4):
                    A(f"v_perm_b32 v{t0+2*q}, v{rb+q}, v{ra+q}, s35")
                    A(f"v_perm_b32 v{t0+2*q+1}, v{rb+q}, v{ra+q}, s36")
                if not last:
                    pace_issue(pc, pr, True)
                lane = bitrev4(4 * (pc & 3) + 2 * pr)
                for n in range(8):
                    A(f"v_dot2c_f32_bf16_dpp v{AO+n}, v{SC+(pc>>2)}, v{t0+n} row_newbcast:{lane} {DPP}")

    A(f"v_mov_b32 v47, {1 if mlate == 1 else 0}")
    A("v_mov_b32 v48, 0")
    A.raw(".p2align 6")
    A.label("L_vloop")
    vbody(False)
    for r in range(6):
        A(f"v_mov_b32 v{SC+r}, v{SC+r+2}")
    A(f"s_add_u32 s60, s60, {8*16384}")
    A("s_add_u32 s59, s59, 1")
    if mlate:
        A(f"v_min_u32 v46, s59, v47")
        A(f"ds_write_b32 v48, v46 offset:{VF}")
        if mlate == 2:
            A("v_mov_b32 v47, 1")
    A("s_cmp_lt_u32 s59, 3")
    A("s_cbranch_scc1 L_vloop")
    stamp(6)
    if not hstop:
        lds_poll("L_pc2", [f"ds_read_b64 v[42:43], v41 offset:{SCL}"], 43, 1)
    vbody(True)
    for c in range(4):
        A(f"v_permlane32_swap_b32 v{AO+c}, v{AO+c+4}")
    for c in range(4):
        A(f"v_add_f32 v{AO+c}, v{AO+c}, v{AO+c+4}")
    for c in range(2):
        A(f"v_permlane16_swap_b32 v{AO+c}, v{AO+c+2}")
    for c in range(2):
        A(f"v_add_f32 v{AO+c}, v{AO+c}, v{AO+c+2}")
    A(f"v_mul_f32 v{AO}, v{AO}, v42")
    A(f"v_mul_f32 v{AO+1}, v{AO+1}, v42")
    A(f"ds_write_b64 v40, v[{AO}:{AO+1}] offset:{OL}")
    A("s_waitcnt lgkmcnt(0)")
    stamp(3)
    A("s_barrier")
    A(f"s_branch {'L_done' if hstop else 'L_fin'}")
    A.label("L_end", pad=False)
    A("s_endpgm")
    A.raw("L_code_end:")
    A.raw('.section .rodata,"a"')
    A.raw(".p2align 6")
    A.raw(f".amdhsa_kernel {NAME}_kernel")
    A.raw("  .amdhsa_next_free_vgpr 256")
    A.raw("  .amdhsa_next_free_sgpr 102")
    A.raw("  .amdhsa_accum_offset 256")
    A.raw("  .amdhsa_group_segment_fixed_size 0")
    A.raw("  .amdhsa_kernarg_size 104")
    A.raw("  .amdhsa_user_sgpr_count 2")
    A.raw("  .amdhsa_user_sgpr_kernarg_segment_ptr 1")
    A.raw("  .amdhsa_system_sgpr_workgroup_id_x 1")
    A.raw("  .amdhsa_float_denorm_mode_32 3")
    A.raw("  .amdhsa_float_denorm_mode_16_64 3")
    A.raw(".end_amdhsa_kernel")
    return A


if __name__ == "__main__":
    out = sys.argv[1]
    kw = {}
    for a in sys.argv[2:]:
        for kv in a.split(","):
            k, v = kv.split("=")
            kw[k] = int(v) if v.lstrip("-").isdigit() else ("" if v == "none" else v)
    A = gen(**kw)
    open(out, "w").write(A.text())
    print(out, "instructions:", A.ninstr)
```
